```python
import torch

def _softmax(x, axis=-1):
    return torch.softmax(x, dim=axis)
def _gelu(x):
    return torch.nn.functional.gelu(x, approximate="tanh")
def _silu(x):
    return torch.nn.functional.silu(x)
def _sigmoid(x):
    return torch.sigmoid(x)
def _layernorm(x, axis=-1, eps=1e-5):
    m = x.mean(dim=axis, keepdim=True)
    v = x.var(dim=axis, keepdim=True, unbiased=False)
    return (x - m) / torch.sqrt(v + eps)
def _scatter_add(tgt, idx, src, axis=0):
    return tgt.clone().index_add_(axis, idx, src)
def _segment_sum(src, seg, n):
    out = torch.zeros((n,) + src.shape[1:], dtype=src.dtype)
    return out.index_add_(0, seg, src)
def _pad(x, pw):
    flat = tuple(v for pair in reversed(pw) for v in pair)
    return torch.nn.functional.pad(x, flat)

kernel_name = 'parallel_sum__mha_block__glu_gated_bilinear__prompt'

def setup_inputs():

    _w = (lambda a: (lambda t: t.to(torch.bfloat16) if t.is_floating_point() else t)(torch.as_tensor(a)))
    def _A_setup():
        B, S, D, H = 1, 2048, 576, 32
        return {
            "x": _w((lambda *s: torch.randn(*s, dtype=torch.bfloat16) * 0.05)(B, S, D)),
            "wqkv": _w((lambda *s: torch.randn(*s, dtype=torch.bfloat16) * 0.05)(D, 3 * D)),
            "wo": _w((lambda *s: torch.randn(*s, dtype=torch.bfloat16) * 0.05)(D, D)),
        }
    _A_in = _A_setup()

    def _B_setup():
        B, S, D, F = 1, 2048, 576, 4608
        return {
            "x": _w((lambda *s: torch.randn(*s, dtype=torch.bfloat16) * 0.05)(B, S, D)),
            "w_gate": _w((lambda *s: torch.randn(*s, dtype=torch.bfloat16) * 0.4)(D, F) * (D ** -0.5)),
            "w_up": _w((lambda *s: torch.randn(*s, dtype=torch.bfloat16) * 0.4)(D, F) * (D ** -0.5)),
            "w_down": _w((lambda *s: torch.randn(*s, dtype=torch.bfloat16) * 0.4)(F, D) * (F ** -0.5)),
        }
    _B_in = _B_setup()

    return {
        "A_x": _A_in["x"],
        "A_wqkv": _A_in["wqkv"],
        "A_wo": _A_in["wo"],
        "B_x": _B_in["x"],
        "B_w_gate": _B_in["w_gate"],
        "B_w_up": _B_in["w_up"],
        "B_w_down": _B_in["w_down"],
    }

def reference(A_x, A_wqkv, A_wo, B_x, B_w_gate, B_w_up, B_w_down):
    def _A_ref(x, wqkv, wo):
        B, S, D = x.shape
        H = 32
        Dh = D // H
        qkv = (lambda x, *d: x.permute(*d))((x @ wqkv).reshape(B, S, 3, H, Dh), 2, 0, 3, 1, 4)
        q, k, v = qkv[0], qkv[1], qkv[2]
        scores = torch.einsum("bhqd,bhkd->bhqk", q, k) * (Dh ** -0.5)
        p = _softmax(scores, axis=-1)
        o = torch.einsum("bhqk,bhkd->bhqd", p, v)
        return (lambda x, *d: x.permute(*d))(o, 0, 2, 1, 3).reshape(B, S, D) @ wo

    def _B_ref(x, w_gate, w_up, w_down):
        g = torch.einsum("bsd,df->bsf", x, w_gate)
        u = torch.einsum("bsd,df->bsf", x, w_up)
        h = g * u
        return torch.einsum("bsf,fd->bsd", h, w_down)

    x = A_x
    xn = _layernorm(x, axis=-1)
    return x + _A_ref(xn, A_wqkv, A_wo) + _B_ref(xn, B_w_gate, B_w_up, B_w_down)
```

```python
import re

TRANS = ("v_exp_f32", "v_log_f32", "v_rcp_f32", "v_rsq_f32", "v_sqrt_f32", "v_sin_f32", "v_cos_f32")
PASSES = {"v_mfma_f32_16x16x32_bf16": 4, "v_mfma_f32_32x32x16_bf16": 8, "v_mfma_f32_32x32x8bf16_1k": 8,
          "v_smfmac_f32_32x32x32_bf16": 8, "v_smfmac_f32_16x16x64_bf16": 4}
D_TO_VALU = {4: 8, 8: 12}
D_TO_C_OVERLAP = {4: 6, 8: 10}
C_WAR = {4: 3, 8: 7}

def R(i, n=1):
    p, j = ("a", i - 256) if i >= 256 else ("v", i)
    assert (i >= 256) == (i + n - 1 >= 256), (i, n)
    return f"{p}{j}" if n == 1 else f"{p}[{j}:{j+n-1}]"

def S(i, n=1):
    return f"s{i}" if n == 1 else f"s[{i}:{i+n-1}]"

_tok = re.compile(r"^-?\|?(?:abs\()?([vas])(?:(\d+)|\[(\d+):(\d+)\])\)?\|?$")
def regs_of(op):
    op = op.strip()
    if op == "vcc": return {("s", "vcc")}
    if op == "exec": return {("s", "exec")}
    if op == "m0": return {("s", "m0")}
    m = _tok.match(op)
    if not m: return set()
    lo = int(m.group(2) if m.group(2) is not None else m.group(3))
    hi = int(m.group(2) if m.group(2) is not None else m.group(4))
    k = m.group(1)
    if k == "a": return {("v", 256 + i) for i in range(lo, hi + 1)}
    return {(k, i) for i in range(lo, hi + 1)}

class Ins:
    __slots__ = ("text", "op", "kind", "w", "r", "a", "b", "c", "passes", "states", "sdata")
    def __init__(self, text):
        self.text = text
        body = text.split(";")[0].strip()
        parts = body.split(None, 1)
        self.op = op = parts[0]
        ops = []
        if len(parts) > 1:
            ops = [o.strip() for o in re.split(r",(?![^\[]*\])", parts[1])]
            if ops:
                last = ops[-1].split()
                ops[-1] = last[0]
                mods = last[1:]
            else: mods = []
        else: mods = []
        self.w = set(); self.r = set(); self.a = self.b = self.c = set(); self.passes = 0; self.states = 1; self.sdata = set()
        rs = [regs_of(o) for o in ops]
        allr = lambda l: set().union(*l) if l else set()
        if op in PASSES:
            self.kind = "mfma"; self.passes = PASSES[op]
            self.w = rs[0]; self.a = rs[1]; self.b = rs[2]
            if op.startswith("v_smfmac"):
                self.c = rs[0]; self.b = self.b | rs[3]
            else: self.c = rs[3]
            self.r = self.a | self.b | self.c
        elif op == "s_nop":
            self.kind = "nop"; self.states = int(ops[0]) + 1
        elif op.startswith("buffer_") or op.startswith("global_"):
            self.kind = "vmem"
            if "lds" in mods or "_lds_" in op:
                self.r = allr(rs) | {("s", "m0")}; self.kind = "dma"
            elif "load" in op:
                self.w = rs[0]; self.r = allr(rs[1:])
            elif op in ("buffer_wbl2", "buffer_inv"):
                pass
            else:
                self.r = allr(rs)
                di = 0 if op.startswith("buffer_") else 1
                if "x3" in op or "x4" in op: self.sdata = rs[di]
                if "atomic" in op and "sc0" in mods: self.w = rs[0]
        elif op.startswith("ds_"):
            self.kind = "ds"
            if "read" in op or "permute" in op or "swizzle" in op:
                self.w = rs[0]; self.r = allr(rs[1:])
            else: self.r = allr(rs)
        elif op.startswith("v_"):
            self.kind = "valu"
            if op.startswith("v_permlane") or op.startswith("v_swap"):
                self.w = rs[0] | rs[1]; self.r = rs[0] | rs[1]
            elif op.startswith("v_nop"): pass
            else:
                self.w = rs[0]; self.r = allr(rs[1:])
                if "_co_" in op: self.w = self.w | rs[1]
                if op.startswith(("v_fmac", "v_dot2c", "v_writelane")) or "UNUSED_PRESERVE" in body or "_dpp" in op: self.r = self.r | rs[0]
                if op.startswith("v_cmpx"): self.w = self.w | {("s", "exec")}
        elif op.startswith("s_"):
            self.kind = "salu"
            if op.startswith(("s_cmp", "s_waitcnt", "s_barrier", "s_branch", "s_cbranch", "s_endpgm", "s_setprio", "s_sleep", "s_bitcmp", "s_setpc")):
                self.r = allr(rs)
            else:
                self.w = rs[0] if rs else set(); self.r = allr(rs[1:])
                if "saveexec" in op: self.w = self.w | {("s", "exec")}
                if op.startswith(("s_load", "s_memtime", "s_memrealtime", "s_buffer_load")): self.kind = "smem"
        else:
            raise ValueError(text)

def need(p, c):
    n = 0
    vw = {x for x in p.w if x[0] == "v"}
    sw = {x for x in p.w if x[0] == "s"}
    if p.kind == "mfma":
        if c.kind == "mfma":
            if vw & (c.a | c.b): n = max(n, D_TO_VALU[p.passes])
            if vw & c.c and not (vw == c.c and p.passes == c.passes): n = max(n, D_TO_C_OVERLAP[p.passes])
            if vw & c.w and not (vw & c.c): n = max(n, 0)
        else:
            if vw & (c.r | c.w): n = max(n, D_TO_VALU[p.passes])
            if c.kind == "valu" and p.c & c.w: n = max(n, C_WAR[p.passes])
    if p.kind == "valu":
        if c.kind == "mfma" and vw & c.r: n = max(n, 2)
        if c.kind == "mfma" and ("s", "exec") in sw: n = max(n, 4)
        if c.kind == "valu":
            if p.op.startswith(TRANS) and not c.op.startswith(TRANS) and vw & c.r: n = max(n, 1)
            if c.op.startswith("v_permlane") and vw & c.r: n = max(n, 2)
            if "_dpp" in c.op and vw & c.r: n = max(n, 2)
            if c.op.startswith(("v_readfirstlane", "v_readlane")) and vw & c.r: n = max(n, 1)
            if sw & c.r: n = max(n, 4 if c.op.startswith(("v_readlane", "v_writelane")) else 2)
            if ("s", "exec") in sw and (c.op.startswith(("v_permlane", "v_readlane", "v_readfirstlane")) or "_dpp" in c.op): n = max(n, 5)
            if ("sdwa" in p.op or "op_sel" in p.text) and vw & (c.r | c.w): n = max(n, 1)
        if c.kind in ("vmem", "dma") and sw & c.r: n = max(n, 5)
        if c.kind == "salu" and sw & c.r: n = max(n, 1)
    if p.kind == "salu" and ("s", "m0") in sw and c.kind == "dma": n = max(n, 1)
    if p.sdata and p.sdata & c.w: n = max(n, 2)
    return n

class Emitter:
    def __init__(self):
        self.out = []
        self.hist = []
        self.vm = []
        self.lg = []
        self.nops = 0
        self.forced = 0
        self.seen = set()
        self.count = 0
    def raw(self, text):
        self.out.append(text)
    def comment(self, text):
        self.out.append("    ; " + text)
    def label(self, name, flush=True):
        if flush and self.hist:
            self.fence()
        self.out.append(name + ":")
    def fence(self):
        worst = 0; dist = 0
        for p in reversed(self.hist):
            lim = D_TO_VALU[p.passes] if p.kind == "mfma" else 5 if p.kind == "valu" else 2
            worst = max(worst, lim - dist)
            dist += p.states
            if dist > 20: break
        if worst > 0: self._push(Ins(f"s_nop {worst-1}"))
        self.hist = []
    def _push(self, ins):
        self.out.append("    " + ins.text)
        self.hist.append(ins)
        if len(self.hist) > 24: self.hist.pop(0)
        self.count += 1
    def __call__(self, text, tag=None):
        ins = Ins(text)
        if ins.kind in ("vmem", "dma") and len(self.vm) >= 63:
            self._push(Ins("s_waitcnt vmcnt(56)")); self.vm = self.vm[-56:]; self.forced += 1
        short = 0; dist = 0
        for p in reversed(self.hist):
            short = max(short, need(p, ins) - dist)
            dist += p.states
            if dist >= 20: break
        if short > 0:
            self._push(Ins(f"s_nop {short-1}")); self.nops += short
        self._push(ins)
        self.seen.add(tag)
        if ins.kind in ("vmem", "dma"):
            self.vm.append(tag)
            assert len(self.vm) <= 63, "vmcnt overflow"
        elif ins.kind == "ds":
            self.lg.append(tag)
        elif ins.kind == "smem":
            self.lg.append("__smem__")
        return ins
    def _n(self, q, tags):
        idx = [i for i, t in enumerate(q) if t in tags]
        if not idx: return None
        return len(q) - 1 - max(idx)
    def wait(self, vm=(), lg=()):
        parts = []
        for t in (list(vm) if vm != "all" else []) + (list(lg) if lg != "all" else []):
            assert t in self.seen, f"wait for an op that was not issued: {t}"
        if vm == "all":
            if self.vm: parts.append("vmcnt(0)"); self.vm = []
        else:
            n = self._n(self.vm, set(vm))
            if n is not None:
                parts.append(f"vmcnt({n})"); self.vm = self.vm[len(self.vm) - n:] if n else []
        if lg == "all":
            if self.lg: parts.append("lgkmcnt(0)"); self.lg = []
        else:
            n = self._n(self.lg, set(lg))
            if n is not None:
                if "__smem__" in self.lg: n = 0
                n = min(n, 15)
                parts.append(f"lgkmcnt({n})"); self.lg = self.lg[len(self.lg) - n:] if n else []
        if parts:
            self._push(Ins("s_waitcnt " + " ".join(parts)))
            return True
        return False
    def text(self):
        return "\n".join(self.out) + "\n"
```

```python
from asmx import *
from layout import *

def kernel_head(e, name):
    e.raw(f".globl {name}\n.p2align 8\n.type {name},@function\n{name}:")

def kernel_desc(name, vgpr, acc):
    return f""".amdhsa_kernel {name}
  .amdhsa_next_free_vgpr {vgpr}
  .amdhsa_next_free_sgpr 102
  .amdhsa_accum_offset {acc}
  .amdhsa_group_segment_fixed_size 0
  .amdhsa_kernarg_size 80
  .amdhsa_user_sgpr_count 2
  .amdhsa_user_sgpr_kernarg_segment_ptr 1
  .amdhsa_system_sgpr_workgroup_id_x 1
.end_amdhsa_kernel
"""

def srd(e, d, ptr, size, delta=0):
    if delta > 0:
        e(f"s_add_u32 s{d}, s{ptr}, {delta}"); e(f"s_addc_u32 s{d+1}, s{ptr+1}, 0")
    elif delta < 0:
        e(f"s_sub_u32 s{d}, s{ptr}, {-delta}"); e(f"s_subb_u32 s{d+1}, s{ptr+1}, 0")
    else:
        e(f"s_mov_b32 s{d}, s{ptr}"); e(f"s_mov_b32 s{d+1}, s{ptr+1}")
    e(f"s_mov_b32 s{d+2}, {size - delta}")
    e(f"s_mov_b32 s{d+3}, 0x20000")

class Stream:
    def __init__(self, e, cap=2):
        self.e = e; self.mf = []; self.pre = {}; self.post = {}; self.queue = []; self.cap = cap
    def mfma(self, text):
        self.mf.append(text); return len(self.mf) - 1
    def before(self, i, fn): self.pre.setdefault(i, []).append(fn)
    def after(self, i, text, tag=None): self.post.setdefault(i, []).append((text, tag))
    def side(self, earliest, deadline, text, tag=None): self.queue.append((earliest, deadline, text, tag))
    def cost(self, text):
        if callable(text): return 0
        if text.startswith("s_"): return 0
        if "store" in text: return 2
        return 1
    def emit(self):
        e = self.e; q = self.queue; qi = 0
        def put(text, tag):
            if callable(text): text()
            else: e(text, tag)
        for i, m in enumerate(self.mf):
            last = max([k for k in range(qi, len(q)) if q[k][1] <= i], default=-1)
            while qi <= last:
                put(q[qi][2], q[qi][3]); qi += 1
            for fn in self.pre.get(i, []): fn()
            e(m)
            used = 0
            for text, tag in self.post.get(i, []):
                put(text, tag); used += self.cost(text)
            while qi < len(q) and q[qi][0] <= i and used + self.cost(q[qi][2]) <= self.cap:
                put(q[qi][2], q[qi][3]); used += self.cost(q[qi][2]); qi += 1
        while qi < len(q):
            put(q[qi][2], q[qi][3]); qi += 1

def lane_fields(e, lane, g, rr, cc):
    e(f"v_and_b32 v{lane}, 63, v0")
    e(f"v_lshrrev_b32 v{g}, 4, v{lane}")
    e(f"v_bfe_u32 v{rr}, v{lane}, 2, 2")
    e(f"v_and_b32 v{cc}, 3, v{lane}")

def line_read_addrs(e, dst, g, rr, cc, t0, t1):
    e(f"v_lshl_add_u32 v{t0}, v{g}, 2, v{rr}")
    e(f"v_lshrrev_b32 v{t1}, 3, v{t0}")
    e(f"v_lshlrev_b32 v{t1}, 11, v{t1}")
    e(f"v_and_b32 v{dst}, 7, v{t0}")
    e(f"v_lshl_add_u32 v{t1}, v{dst}, 7, v{t1}")
    e(f"v_lshl_add_u32 v{t1}, v{cc}, 3, v{t1}")
    e(f"v_bfe_u32 v{t0}, v{t0}, 1, 2")
    for t in range(4):
        e(f"v_xor_b32 v{dst+t}, {t}, v{t0}")
        e(f"v_lshl_add_u32 v{dst+t}, v{dst+t}, 5, v{t1}")

def kappa(e, dst, rho, t):
    e(f"v_bfe_u32 v{dst}, v{rho}, 2, 2")
    e(f"v_lshlrev_b32 v{dst}, 3, v{dst}")
    e(f"v_lshrrev_b32 v{t}, 4, v{rho}")
    e(f"v_lshl_add_u32 v{dst}, v{t}, 2, v{dst}")
    e(f"v_and_b32 v{t}, 3, v{rho}")
    e(f"v_add_u32 v{dst}, v{dst}, v{t}")
```

```python
from common import *

V_LANE = 1
V_AK0, V_AK1, V_AV = 4, 8, 12
V_Q0 = 16
V_Q1 = 24
V_K0, V_VA, V_VB, V_K1, V_IDX = 32, 36, 40, 44, 46
V_L16, V_AO1 = 47, 48
V_T = 50
V_S = 64
V_O = 128
V_M = 160
S_W, S_RB, S_C = 3, 4, 5
SRD_WS = 8
S_KVOFF, S_M0, S_O0, S_O1 = 28, 29, 30, 31

def gen_attn(name="attn_kernel", zero_rows=True):
    e = Emitter()
    ws = f"s[{SRD_WS}:{SRD_WS+3}]"
    kernel_head(e, name)
    e("s_cmp_ge_u32 s2, 256")
    e(f"s_cbranch_scc1 L_{name}_end")
    e(f"s_load_dwordx2 s[46:47], s[0:1], {KA['ws']}")
    e("v_lshrrev_b32 v2, 6, v0")
    e(f"v_and_b32 v{V_LANE}, 63, v0")
    e(f"v_readfirstlane_b32 s{S_W}, v2")
    e("s_and_b32 s6, s2, 7")
    e(f"s_lshr_b32 s{S_RB}, s2, 5")
    e("s_bfe_u32 s7, s2, 0x20003")
    e(f"s_lshl_b32 s{S_C}, s6, 2")
    e(f"s_add_u32 s{S_C}, s{S_C}, s7")
    e(f"v_lshlrev_b32 v{V_L16}, 4, v{V_LANE}")
    e(f"s_lshl_b32 s{S_M0}, s{S_W}, 10")
    e(f"s_mul_i32 s{S_KVOFF}, s{S_C}, {KV_HEAD}")
    e(f"s_add_u32 s{S_KVOFF}, s{S_KVOFF}, s{S_M0}")
    e(f"s_add_u32 s{S_KVOFF}, s{S_KVOFF}, {KV}")
    e(f"s_lshl_b32 s42, s{S_C}, 3")
    e(f"s_add_u32 s42, s42, s{S_RB}")
    e("s_lshl_b32 s42, s42, 2")
    e(f"s_add_u32 s42, s42, s{S_W}")
    e(f"s_lshl_b32 s{S_O0}, s42, 11")
    e(f"s_add_u32 s{S_O0}, s{S_O0}, {OF0}")
    e(f"s_lshl_b32 s{S_O1}, s42, 8")
    e(f"s_add_u32 s{S_O1}, s{S_O1}, {OF1}")
    e(f"s_mul_i32 s42, s42, {QF_STRIDE}")
    e(f"s_add_u32 s42, s42, {QF}")
    e(f"v_mov_b32 v3, {OOB}")
    e(f"v_lshlrev_b32 v2, 3, v{V_LANE}")
    e(f"v_cmp_gt_u32 vcc, 32, v{V_LANE}")
    e(f"v_cndmask_b32 v2, v3, v2, vcc")
    e(f"v_lshlrev_b32 v{V_AO1}, 2, v{V_LANE}")
    e(f"v_cndmask_b32 v{V_AO1}, v3, v{V_AO1}, vcc")
    e.wait(lg="all")
    srd(e, SRD_WS, 46, WS_SIZE)
    for q in range(2):
        e(f"buffer_load_dwordx4 {R(V_Q0+4*q,4)}, v{V_L16}, {ws}, s42 offen offset:{q*1024}", "q")
    e(f"buffer_load_dwordx2 {R(V_T,2)}, v2, {ws}, s42 offen offset:2048", "q")
    for n in range(37):
        e(f"s_add_u32 m0, s{S_M0}, {n*4096}")
        e(f"buffer_load_dwordx4 v{V_L16}, {ws}, s{S_KVOFF} offen lds", ("kv", n))
        e(f"s_add_u32 s{S_KVOFF}, s{S_KVOFF}, 4096")
    e(f"v_mov_b32 v{V_AK0}, v{V_L16}")
    e(f"v_and_b32 v2, 31, v{V_LANE}")
    e(f"v_lshlrev_b32 v{V_AK1}, 3, v2")
    e(f"v_lshrrev_b32 v3, 5, v{V_LANE}")
    e(f"v_mul_u32_u24 v3, {VT_HALF}, v3")
    e(f"v_min_u32 v{V_AV}, 18, v2")
    e(f"v_lshl_add_u32 v{V_AV}, v{V_AV}, 4, v3")
    if zero_rows:
        e(f"v_mov_b32 v3, 0x100000")
        e(f"v_cmp_gt_u32 vcc, 19, v2")
        e(f"v_cmp_eq_u32 s[42:43], 22, v2")
        e(f"s_or_b64 vcc, vcc, s[42:43]")
        e(f"v_cndmask_b32 v{V_AV}, v3, v{V_AV}, vcc")
    for q in range(1, 4):
        for a in (V_AK0, V_AK1, V_AV): e(f"v_add_u32 v{a+q}, {q*KV_CHUNK}, v{a}")
    e(f"v_mov_b32 v{V_IDX}, 0xdddd")
    for i in range(32): e(f"v_mov_b32 v{V_O+i}, 0")
    e.wait(vm=["q"])
    for q in range(2):
        e(f"v_mov_b32 v{V_Q1+4*q}, v{V_T+q}")
        e(f"v_mov_b32 v{V_Q1+4*q+1}, 0")
        e(f"v_mov_b32 v{V_Q1+4*q+2}, 0")
        e(f"v_mov_b32 v{V_Q1+4*q+3}, v{V_T+q}")

    Sb = lambda q, T: V_S + 32 * q + 16 * (T & 1)
    rdK0 = lambda T: (f"ds_read_b128 {R(V_K0,4)}, v{V_AK0+T//16} offset:{(T%16)*1024}", ("k0", T))
    rdK1 = lambda T: (f"ds_read_b64 {R(V_K1,2)}, v{V_AK1+T//16} offset:{KV_K1+((T%16)//2)*256}", ("k1", T // 2))
    rdV = lambda T, h: (f"ds_read_b128 {R(V_VB if h else V_VA,4)}, v{V_AV+T//16} offset:{KV_VT+((T%16)*2+h)*VT_GRP}", ("v", T, h))
    qk0 = lambda q, T, c="0": f"v_mfma_f32_32x32x16_bf16 {R(Sb(q,T),16)}, {R(V_K0,4)}, {R(V_Q0+4*q,4)}, {c}"
    qk1 = lambda q, T: f"v_mfma_f32_32x32x8bf16_1k {R(Sb(q,T),16)}, {R(V_K1,2)}, {R(V_Q1+4*q+2*(T&1),2)}, {R(Sb(q,T),16)}"
    pv = lambda q, T, h: f"v_smfmac_f32_32x32x32_bf16 {R(V_O+16*q,16)}, {R(V_VB if h else V_VA,4)}, {R(Sb(q,T)+8*h,8)}, v{V_IDX}"
    def chunk_ready(ch):
        e.wait(vm=[("kv", n) for n in range((37 * (ch + 1) - 1) // 4 + 1)])
        e("s_barrier")
    chunk_ready(0)
    e(*rdK0(0)); e(*rdK1(0)); e(*rdV(0, 0))
    e.wait(lg=[("k1", 0)])
    e(qk0(0, 0)); e(qk0(1, 0)); e(*rdK0(1)); e(qk1(0, 0)); e(qk1(1, 0))
    NT = 64
    for T in range(NT):
        nx = T + 1 < NT
        for slot in range(32):
            q, i = slot >> 4, slot & 15
            if slot == 2:
                if T > 0: e(pv(1, T - 1, 1))
                e(*rdV(T, 1))
                if nx: e.wait(lg=[("k0", T + 1)])
            if slot == 6:
                if nx: e(qk0(0, T + 1))
                e.wait(lg=[("v", T, 0)])
            if slot == 10:
                e(pv(0, T, 0))
                if nx: e.wait(lg=[("k1", (T + 1) // 2)])
            if slot == 14:
                if nx: e(qk1(0, T + 1))
                e.wait(lg=[("v", T, 1)])
            if slot == 18:
                e(pv(0, T, 1))
                if T % 16 == 14 and T + 2 < NT: chunk_ready((T + 2) // 16)
            if slot == 22 and nx:
                e(qk0(1, T + 1))
                if T + 2 < NT: e(*rdK0(T + 2))
            if slot == 26:
                e(pv(1, T, 0))
                if nx: e(*rdV(T + 1, 0))
            if slot == 30 and nx:
                e(qk1(1, T + 1))
                if T % 2 == 0 and T + 2 < NT: e(*rdK1(T + 2))
            e(f"v_exp_f32 v{Sb(q,T)+i}, v{Sb(q,T)+i}")
    e(pv(1, NT - 1, 1))
    e(f"s_mov_b32 s42, {f32(2.0**-64)}")
    e(f"s_mov_b32 s43, {f32(2.0**64)}")
    e(f"s_mov_b32 s44, {f32(2.0**120)}")
    e("s_mov_b64 s[48:49], exec")
    for q in range(2):
        O = V_O + 16 * q
        e(f"v_max3_f32 v{V_T}, |v{O}|, |v{O+1}|, |v{O+2}|")
        for r in (3, 5, 7): e(f"v_max3_f32 v{V_T}, v{V_T}, |v{O+r}|, |v{O+r+1}|")
        e(f"v_max_f32 v{V_T}, v{V_T}, |v{O+9}|")
        e(f"v_cmp_le_f32 vcc, s42, v{O+10}")
        e("s_and_b64 s[48:49], s[48:49], vcc")
        e(f"v_cmp_ge_f32 vcc, s43, v{O+10}")
        e("s_and_b64 s[48:49], s[48:49], vcc")
        e(f"v_cmp_ge_f32 vcc, s44, v{V_T}")
        e("s_and_b64 s[48:49], s[48:49], vcc")
    e("s_cmp_eq_u64 s[48:49], exec")
    e(f"s_cbranch_scc0 L_{name}_slow")
    e.label(f"L_{name}_fin")
    for q in range(2):
        O = V_O + 16 * q
        e(f"v_rcp_f32 v{O+10}, v{O+10}")
        for r in range(10): e(f"v_mul_f32 v{O+r}, v{O+r}, v{O+10}")
        for r in range(5): e(f"v_cvt_pk_bf16_f32 v{V_T+6*q+r}, v{O+2*r}, v{O+2*r+1}")
        e(f"buffer_store_dwordx4 {R(V_T+6*q,4)}, v{V_L16}, {ws}, s{S_O0} offen offset:{q*1024}")
        e(f"buffer_store_dword v{V_T+6*q+4}, v{V_AO1}, {ws}, s{S_O1} offen offset:{q*128}")
    e.label(f"L_{name}_end")
    e("s_endpgm")

    e.label(f"L_{name}_slow")
    A0, A1, AV = V_T, V_T + 1, V_T + 2
    def loop(tag, body):
        e(f"v_mov_b32 v{A0}, v{V_AK0}"); e(f"v_mov_b32 v{A1}, v{V_AK1}"); e(f"v_mov_b32 v{AV}, v{V_AV}")
        e("s_mov_b32 s42, 0")
        e.label(f"L_{name}_{tag}")
        e(f"ds_read_b64 {R(V_K1,2)}, v{A1} offset:{KV_K1}")
        for t in range(2):
            e(f"ds_read_b128 {R(V_K0,4)}, v{A0} offset:{t*1024}")
            e(f"ds_read_b128 {R(V_VA,4)}, v{AV} offset:{KV_VT+2*t*VT_GRP}")
            e(f"ds_read_b128 {R(V_VB,4)}, v{AV} offset:{KV_VT+(2*t+1)*VT_GRP}")
            e.wait(lg="all")
            body(t)
            e.fence()
        e(f"v_add_u32 v{A0}, 2048, v{A0}"); e(f"v_add_u32 v{A1}, 256, v{A1}"); e(f"v_add_u32 v{AV}, {4*VT_GRP}, v{AV}")
        e("s_add_u32 s42, s42, 1")
        e("s_and_b32 s43, s42, 7")
        e(f"s_cbranch_scc1 L_{name}_{tag}")
        e(f"v_add_u32 v{A0}, {KV_CHUNK-16384}, v{A0}"); e(f"v_add_u32 v{A1}, {KV_CHUNK-2048}, v{A1}"); e(f"v_add_u32 v{AV}, {KV_CHUNK-32*VT_GRP}, v{AV}")
        e("s_cmp_lt_u32 s42, 32")
        e(f"s_cbranch_scc1 L_{name}_{tag}")
        e.fence()
    for q in range(2): e(f"v_mov_b32 v{V_M+16*q}, 0xff800000")
    def body_max(t):
        for q in range(2): e(qk0(q, t))
        for q in range(2): e(qk1(q, t))
        for q in range(2):
            for r in range(0, 16, 2): e(f"v_max3_f32 v{V_M+16*q}, v{V_M+16*q}, v{Sb(q,t)+r}, v{Sb(q,t)+r+1}")
    loop("max", body_max)
    for q in range(2):
        M = V_M + 16 * q
        e(f"v_mov_b32 v{M+1}, v{M}")
        e(f"v_permlane32_swap_b32 v{M}, v{M+1}")
        e(f"v_max_f32 v{M}, v{M}, v{M+1}")
        e(f"v_sub_f32 v{M}, 0, v{M}")
        for r in range(1, 16): e(f"v_mov_b32 v{M+r}, v{M}")
    for i in range(32): e(f"v_mov_b32 v{V_O+i}, 0")
    def body_sum(t):
        for q in range(2): e(qk0(q, t, R(V_M + 16 * q, 16)))
        for q in range(2): e(qk1(q, t))
        for q in range(2):
            for r in range(16): e(f"v_exp_f32 v{Sb(q,t)+r}, v{Sb(q,t)+r}")
        for q in range(2):
            for h in range(2): e(pv(q, t, h))
    loop("sum", body_sum)
    e(f"s_branch L_{name}_fin")
    print(f"{name}: {e.count} instrs, {e.nops} nop states")
    return e.text(), kernel_desc(name, 192, 192), KV_HEAD
```

```python
from common import *

V_LANE, V_G, V_RR, V_CC = 1, 2, 3, 4
V_RD = 8
V_RQ = 16
V_DA, V_DQ = 17, 18
V_L16, V_L8, V_L8Q = 19, 20, 21
V_T = 24
V_W = 64
V_ACC = 80
def XR(s, tt):
    return 256 + 16 * s + 4 * tt if s < 16 else 224 + 16 * (s - 16) + 4 * tt
S_W, S_RB, S_NT, S_J = 3, 4, 5, 6
SRD_WS, SRD_A, SRD_B = 8, 12, 16
S_M0, S_OFF, S_XOFF, S_P = 28, 29, 30, 32

def gen_g2(name="g2_kernel", NS=16, DW=10, DX=8, BK=2, NBUF=4, stagger=2):
    e = Emitter()
    QB = NS * 8192
    ws = f"s[{SRD_WS}:{SRD_WS+3}]"
    kernel_head(e, name)
    e("s_cmp_ge_u32 s2, 256")
    e(f"s_cbranch_scc1 L_{name}_end")
    e(f"s_load_dwordx2 s[44:45], s[0:1], {KA['wd']}")
    e(f"s_load_dwordx2 s[46:47], s[0:1], {KA['ws']}")
    e("v_lshrrev_b32 v5, 6, v0")
    lane_fields(e, V_LANE, V_G, V_RR, V_CC)
    e(f"v_readfirstlane_b32 s{S_W}, v5")
    e(f"s_and_b32 s{S_J}, s2, 7")
    e(f"s_lshr_b32 s{S_RB}, s2, 5")
    e(f"s_bfe_u32 s{S_NT}, s2, 0x20003")
    e(f"v_lshlrev_b32 v{V_L16}, 4, v{V_LANE}")
    e(f"v_lshlrev_b32 v{V_L8}, 3, v{V_LANE}")
    e(f"v_add_u32 v{V_L8Q}, 4096, v{V_L8}")
    e(f"v_lshrrev_b32 v6, 3, v0")
    e(f"v_mul_u32_u24 v7, 1152, v6")
    e(f"v_and_b32 v24, 6, v6")
    e(f"v_and_b32 v25, 7, v0")
    e(f"v_xor_b32 v24, v24, v25")
    e(f"v_lshl_add_u32 v{V_DA}, v24, 4, v7")
    e(f"v_lshrrev_b32 v6, 1, v0")
    e(f"v_mul_u32_u24 v7, 1152, v6")
    e(f"v_and_b32 v24, 1, v0")
    e(f"v_lshl_add_u32 v{V_DQ}, v24, 4, v7")
    e(f"s_lshl_b32 s{S_M0}, s{S_W}, 11")
    e(f"s_mul_i32 s42, s{S_J}, {576*1152}")
    e(f"s_lshl_b32 s43, s{S_NT}, 8")
    e(f"s_add_u32 s{S_OFF}, s42, s43")
    e(f"s_lshl_b32 s43, s{S_NT}, 5")
    e(f"s_add_u32 s48, s42, s43")
    e(f"s_add_u32 s48, s48, 1024")
    e(f"s_lshl_b32 s49, s{S_W}, 10")
    e(f"s_lshl_b32 s42, s{S_RB}, 3")
    e(f"s_add_u32 s42, s42, s{S_J}")
    e(f"s_lshl_b32 s42, s42, 2")
    e(f"s_add_u32 s42, s42, s{S_W}")
    e(f"s_mul_i32 s42, s42, 73728")
    e(f"s_add_u32 s{S_XOFF}, s42, {HF}")
    e.wait(lg="all")
    srd(e, SRD_WS, 46, WS_SIZE)
    srd(e, SRD_A, 44, N_WF)
    srd(e, SRD_B, 44, N_WF, 128 - 1024)
    def issue_x(s):
        out = []
        for tt in range(4):
            if s < 16:
                out.append((f"buffer_load_dwordx4 {R(XR(s,tt),4)}, v{V_L16}, {ws}, s{S_XOFF} offen offset:{tt*1024}", ("x", s)))
            else:
                for h in range(2):
                    out.append((f"buffer_load_dwordx2 {R(XR(s,tt)+2*h,2)}, v{V_L8}, {ws}, s{S_XOFF} offen offset:{tt*1024+h*512}", ("x", s)))
        out.append((f"s_add_u32 s{S_XOFF}, s{S_XOFF}, 4096", None))
        return out
    def issue_w(n):
        out = []
        if n % 4 == 0:
            out.append((f"s_add_u32 m0, s49, {QB + n * 1024}", None))
            out.append((f"buffer_load_dwordx4 v{V_DQ}, s[{SRD_A}:{SRD_A+3}], s48 offen lds", ("w", n)))
            out.append((f"s_add_u32 s48, s48, {128*1152}", None))
        out.append((f"s_add_u32 m0, s{S_M0}, {(n % NS) * 8192}", None))
        out.append((f"buffer_load_dwordx4 v{V_DA}, s[{SRD_A}:{SRD_A+3}], s{S_OFF} offen lds", ("w", n)))
        out.append((f"buffer_load_dwordx4 v{V_DA}, s[{SRD_B}:{SRD_B+3}], s{S_OFF} offen offset:1024 lds", ("w", n)))
        out.append((f"s_add_u32 s{S_OFF}, s{S_OFF}, {32*1152}", None))
        return out
    nx = nw = 0
    for s in range(max(DX, DW)):
        if s < DW:
            for t, tag in issue_w(s): e(t, tag)
            nw += 1
        if s < DX:
            for t, tag in issue_x(s): e(t, tag)
            nx += 1
    line_read_addrs(e, V_RD, V_G, V_RR, V_CC, 6, 7)
    for t in range(4): e(f"v_add_u32 v{V_RD+4+t}, 0x10000, v{V_RD+t}")
    e(f"v_lshl_add_u32 v6, v{V_G}, 2, v{V_RR}")
    e(f"v_lshlrev_b32 v6, 5, v6")
    e(f"v_lshl_add_u32 v6, v{V_CC}, 3, v6")
    e(f"v_add_u32 v{V_RQ}, {QB}, v6")
    e(f"s_lshl_b32 s42, s{S_J}, 7")
    e(f"s_lshl_b32 s43, s{S_RB}, 4")
    e(f"s_add_u32 s42, s42, s43")
    e(f"s_lshl_b32 s43, s{S_W}, 2")
    e(f"s_add_u32 s42, s42, s43")
    e(f"s_lshl_b32 s42, s42, 2")
    e(f"s_add_u32 s42, s42, s{S_NT}")
    e(f"s_mul_i32 s42, s42, 4608")
    e(f"s_add_u32 s{S_P}, s42, {PF}")
    for tt in range(1, 4): e(f"s_add_u32 s{S_P+tt}, s{S_P}, {tt*18432}")

    groups = [[8], [0, 1], [2, 3], [4, 5], [6, 7]]
    frags = [(s, t) for s in range(18 - stagger) for t in range(9)]
    for gr in groups:
        for s in range(18 - stagger, 18): frags += [(s, t) for t in gr]
    def rd(n, t, half):
        if t == 8: return V_RQ, n * 1024 + half * 512
        slot = (n % NS) * 8192
        hi = slot >= 65536
        return V_RD + 4 * hi + (t & 3), slot - 65536 * hi + (t >> 2) * 1024 + half * 4096
    acc = lambda t, tt: V_ACC + 16 * t + 4 * tt
    st = Stream(e)
    nf = len(frags)
    for i, (s, t) in enumerate(frags):
        w = V_W + 4 * (i % NBUF)
        for tt in range(4):
            d = R(acc(t, tt), 4); c = "0" if s == 0 else d
            st.mfma(f"v_mfma_f32_16x16x32_bf16 {d}, {R(w,4)}, {R(XR(s,tt),4)}, {c}")
    def read_frag(i, half):
        s, t = frags[i]
        a, off = rd(s, t, half)
        return f"ds_read_b64_tr_b16 {R(V_W + 4 * (i % NBUF) + 2 * half,2)}, v{a} offset:{off}", ("f", i)
    last_use = {}
    for i, (s, t) in enumerate(frags): last_use[s] = i
    LOOK = NBUF - 1
    state = {"nw": nw, "nx": nx}
    def sync(upto):
        e.wait(vm=[("w", n) for n in range(upto + 1)])
        e("s_barrier")
    sync(BK - 1); ready = BK - 1
    for i in range(LOOK):
        for h in range(2): e(*read_frag(i, h))
    xseen = set()
    for i, (s, t) in enumerate(frags):
        m0 = 4 * i
        if s not in xseen:
            xseen.add(s)
            st.before(m0, lambda s=s: e.wait(vm=[("x", s)]))
            if state["nx"] < 18:
                for t_, tag in issue_x(state["nx"]): st.side(m0 + 1, 10 ** 9, t_, tag)
                state["nx"] += 1
        st.before(m0, lambda i=i: e.wait(lg=[("f", i)]))
        j = i + LOOK
        if j < nf:
            if frags[j][0] > ready:
                up = min(17, max(frags[j][0], ready + BK))
                st.before(m0, lambda up=up: sync(up))
                ready = up
                while state["nw"] < 18 and all(last_use[q] <= i for q in range(state["nw"] - NS + 1)) and state["nw"] <= up + DW:
                    for t_, tag in issue_w(state["nw"]): st.side(m0 + 1, 10 ** 9, t_, tag)
                    state["nw"] += 1
            for h in range(2): st.after(m0 + h, *read_frag(j, h))
        if s == 17:
            ear = m0 + 5
            if t == 8:
                for tt in range(4):
                    a_ = acc(t, tt)
                    for r in range(2): st.side(ear, 10 ** 9, f"v_cvt_pk_bf16_f32 v{V_T+16+2*tt+r}, v{a_+2*r}, v{a_+2*r+1}")
                    st.side(ear, 10 ** 9, f"buffer_store_dwordx2 {R(V_T+16+2*tt,2)}, v{V_L8Q}, {ws}, s{S_P+tt} offen", "st")
            elif t & 1:
                pr = t >> 1; T = V_T + 16 * (pr & 1)
                for tt in range(4):
                    for h in range(2):
                        a_ = acc(t - 1 + h, tt)
                        for r in range(2): st.side(ear, 10 ** 9, f"v_cvt_pk_bf16_f32 v{T+4*tt+2*h+r}, v{a_+2*r}, v{a_+2*r+1}")
                    st.side(ear, 10 ** 9, f"buffer_store_dwordx4 {R(T+4*tt,4)}, v{V_L16}, {ws}, s{S_P+tt} offen offset:{pr*1024}", "st")
    assert state["nw"] == 18 and state["nx"] == 18, state
    st.emit()
    e.label(f"L_{name}_end")
    e("s_endpgm")
    print(f"{name}: {e.count} instrs, {e.nops} nop states")
    return e.text(), kernel_desc(name, 512, 256), QB + 20 * 1024
```

```python
from common import *

def gen_ln(name="ln_kernel"):
    e = Emitter()
    kernel_head(e, name)
    e("s_cmp_ge_u32 s2, 256")
    e(f"s_cbranch_scc1 L_{name}_end")
    e(f"s_load_dwordx2 s[4:5], s[0:1], {KA['x']}")
    e(f"s_load_dwordx2 s[6:7], s[0:1], {KA['ws']}")
    e("v_lshrrev_b32 v1, 3, v0")
    e("v_and_b32 v2, 7, v0")
    e("s_lshl_b32 s3, s2, 3")
    e("v_add_u32 v1, s3, v1")
    e("v_mul_u32_u24 v3, 1152, v1")
    e("v_lshl_add_u32 v3, v2, 4, v3")
    e("v_lshrrev_b32 v4, 6, v1")
    e("s_mov_b32 s16, 73728")
    e("v_mul_lo_u32 v4, v4, s16")
    e("v_lshrrev_b32 v5, 2, v2")
    e("v_lshl_add_u32 v4, v5, 12, v4")
    e("v_bfe_u32 v5, v1, 4, 2")
    e("v_lshl_add_u32 v4, v5, 10, v4")
    e("v_and_b32 v5, 3, v2")
    e("v_lshl_add_u32 v4, v5, 8, v4")
    e("v_and_b32 v5, 15, v1")
    e("v_lshl_add_u32 v4, v5, 4, v4")
    e.wait(lg="all")
    srd(e, 8, 4, N_X)
    srd(e, 12, 6, WS_SIZE)
    X = 16; U = 56
    for i in range(9):
        e(f"buffer_load_dwordx4 {R(X+4*i,4)}, v3, s[8:11], 0 offen offset:{i*128}", tag=i)
    e("s_mov_b32 s17, 0xffff0000")
    for a in range(6, 10): e(f"v_mov_b32 v{a}, 0")
    for i in range(9):
        e.wait(vm=[i])
        for r in range(4):
            k = 4 * i + r
            e(f"v_lshlrev_b32 v{U+2*k}, 16, v{X+k}")
            e(f"v_and_b32 v{U+2*k+1}, s17, v{X+k}")
            e(f"v_add_f32 v{6+(r&1)*2}, v{6+(r&1)*2}, v{U+2*k}")
            e(f"v_add_f32 v{7+(r&1)*2}, v{7+(r&1)*2}, v{U+2*k+1}")
    def reduce8():
        e("v_add_f32 v6, v6, v7"); e("v_add_f32 v8, v8, v9"); e("v_add_f32 v6, v6, v8")
        e("v_add_f32_dpp v6, v6, v6 quad_perm:[1,0,3,2] row_mask:0xf bank_mask:0xf")
        e("v_add_f32_dpp v6, v6, v6 quad_perm:[2,3,0,1] row_mask:0xf bank_mask:0xf")
        e("v_add_f32_dpp v6, v6, v6 row_half_mirror row_mask:0xf bank_mask:0xf")
    reduce8()
    e(f"v_mul_f32 v10, {f32(1.0/576)}, v6")
    for a in range(6, 10): e(f"v_mov_b32 v{a}, 0")
    for k in range(72):
        e(f"v_sub_f32 v{11+(k&3)}, v{U+k}, v10")
        e(f"v_fmac_f32 v{6+(k&3)}, v{11+(k&3)}, v{11+(k&3)}")
    reduce8()
    e(f"v_mul_f32 v6, {f32(1.0/576)}, v6")
    e("v_cvt_pk_bf16_f32 v11, v10, v6")
    e("v_lshlrev_b32 v10, 16, v11")
    e("v_and_b32 v6, s17, v11")
    e(f"v_add_f32 v6, {f32(1e-5)}, v6")
    e("v_cvt_pk_bf16_f32 v6, v6, v6")
    e("v_and_b32 v6, s17, v6")
    e("v_sqrt_f32 v6, v6")
    e("v_cvt_pk_bf16_f32 v6, v6, v6")
    e("v_and_b32 v6, s17, v6")
    e("v_rcp_f32 v6, v6")
    e("s_mov_b32 s18, 0")
    for i in range(9):
        for r in range(4):
            k = 4 * i + r
            e(f"v_sub_f32 v{U+2*k}, v{U+2*k}, v10")
            e(f"v_sub_f32 v{U+2*k+1}, v{U+2*k+1}, v10")
            e(f"v_cvt_pk_bf16_f32 v{X+k}, v{U+2*k}, v{U+2*k+1}")
            e(f"v_lshlrev_b32 v{U+2*k}, 16, v{X+k}")
            e(f"v_and_b32 v{U+2*k+1}, s17, v{X+k}")
            e(f"v_mul_f32 v{U+2*k}, v{U+2*k}, v6")
            e(f"v_mul_f32 v{U+2*k+1}, v{U+2*k+1}, v6")
            e(f"v_cvt_pk_bf16_f32 v{X+k}, v{U+2*k}, v{U+2*k+1}")
        e(f"buffer_store_dwordx4 {R(X+4*i,4)}, v4, s[12:15], s18 offen")
        e("s_add_u32 s18, s18, 8192")
    e.label(f"L_{name}_end")
    e("s_endpgm")
    return e.text(), kernel_desc(name, 128, 128)
```

```python
from common import *

V_LANE, V_G, V_RR, V_CC = 1, 2, 3, 4
V_RD = 8
V_RC = 16
V_DAB, V_DC = 22, 23
V_L16, V_L8 = 24, 25
V_AQK, V_AV0, V_AV1, V_AVM = 26, 27, 28, 29
V_ESC = 30
V_T = 32
V_W = 64
V_ACC = 96
def XR(s, tt):
    return 256 + 16 * s + 4 * tt if s < 16 else 224 + 16 * (s - 16) + 4 * tt
S_W, S_RB, S_C, S_J, S_I = 3, 4, 5, 6, 7
SRD_WS, SRD_G, SRD_U, SRD_A, SRD_B = 8, 12, 16, 20, 24
S_M0, S_OFFAB, S_OFFC, S_STEPC, S_XOFF, S_COLB = 28, 29, 30, 31, 32, 33
S_H0, S_H1, S_HQ, S_KV, S_Q, S_QS = 34, 35, 36, 37, 38, 39
S_MASK3 = 40

def gen_p1(name="p1_kernel", NS=16, DW=12, DX=8, BK=2, NBUF=4, stagger=2):
    e = Emitter()
    kernel_head(e, name)
    e("s_cmp_ge_u32 s2, 256")
    e(f"s_cbranch_scc1 L_{name}_end")
    e(f"s_load_dwordx2 s[44:45], s[0:1], {KA['wqkv']}")
    e(f"s_load_dwordx4 s[48:51], s[0:1], {KA['wg']}")
    e(f"s_load_dwordx2 s[46:47], s[0:1], {KA['ws']}")
    e("v_lshrrev_b32 v5, 6, v0")
    lane_fields(e, V_LANE, V_G, V_RR, V_CC)
    e(f"v_readfirstlane_b32 s{S_W}, v5")
    e(f"s_and_b32 s{S_J}, s2, 7")
    e(f"s_lshr_b32 s{S_RB}, s2, 5")
    e(f"s_bfe_u32 s{S_I}, s2, 0x20003")
    e(f"s_lshl_b32 s{S_C}, s{S_J}, 2")
    e(f"s_add_u32 s{S_C}, s{S_C}, s{S_I}")
    e(f"v_lshlrev_b32 v{V_L16}, 4, v{V_LANE}")
    e(f"v_lshlrev_b32 v{V_L8}, 3, v{V_LANE}")
    e(f"v_lshrrev_b32 v6, 3, v0")
    kappa(e, 7, 6, 32)
    e(f"v_mul_u32_u24 v7, 9216, v7")
    e(f"v_and_b32 v32, 6, v6")
    e(f"v_and_b32 v33, 7, v0")
    e(f"v_xor_b32 v32, v32, v33")
    e(f"v_lshl_add_u32 v{V_DAB}, v32, 4, v7")
    e(f"s_lshl_b32 s{S_M0}, s{S_W}, 11")
    e(f"s_mul_i32 s{S_OFFAB}, s{S_J}, 1152")
    e(f"s_lshl_b32 s42, s{S_I}, 5")
    e(f"s_add_u32 s43, s{S_OFFAB}, s42")
    e(f"s_add_u32 s43, s43, 1024")
    e(f"s_lshl_b32 s42, s{S_I}, 8")
    e(f"s_add_u32 s{S_OFFAB}, s{S_OFFAB}, s42")
    e(f"s_add_u32 s{S_COLB}, s{S_OFFAB}, 128")
    e(f"s_lshl_b32 s42, s{S_RB}, 2")
    e(f"s_add_u32 s42, s42, s{S_W}")
    e(f"s_mul_i32 s{S_XOFF}, s42, 73728")
    e.wait(lg="all")
    srd(e, SRD_WS, 46, WS_SIZE)
    srd(e, SRD_G, 48, N_WF)
    srd(e, SRD_U, 50, N_WF, -1024)

    def issue_x(s):
        out = []
        for tt in range(4):
            out.append((f"buffer_load_dwordx4 {R(XR(s,tt),4)}, v{V_L16}, s[{SRD_WS}:{SRD_WS+3}], s{S_XOFF} offen offset:{tt*1024}", ("x", s)))
        out.append((f"s_add_u32 s{S_XOFF}, s{S_XOFF}, 4096", None))
        return out
    def issue_w(n):
        out = [(f"s_add_u32 m0, s{S_M0}, {(n % NS) * 8192}", None)]
        if 18 <= n < 36:
            out.append((f"buffer_load_dwordx4 v{V_DC}, s[{SRD_A}:{SRD_A+3}], s{S_OFFC} offen lds", ("w", n)))
            out.append((f"buffer_load_dwordx4 v{V_DC}, s[{SRD_B}:{SRD_B+3}], s{S_OFFC} offen offset:1024 lds", ("w", n)))
            out.append((f"s_add_u32 s{S_OFFC}, s{S_OFFC}, s{S_STEPC}", None))
        else:
            out.append((f"buffer_load_dwordx4 v{V_DAB}, s[{SRD_G}:{SRD_G+3}], s{S_OFFAB} offen lds", ("w", n)))
            out.append((f"buffer_load_dwordx4 v{V_DAB}, s[{SRD_U}:{SRD_U+3}], s{S_OFFAB} offen offset:1024 lds", ("w", n)))
            if n == 17: out.append((f"s_mov_b32 s{S_OFFAB}, s{S_COLB}", None))
            else: out.append((f"s_add_u32 s{S_OFFAB}, s{S_OFFAB}, {32*9216}", None))
        return out
    nx = nw = 0
    for s in range(max(DX, DW)):
        if s < DW:
            for t, tag in issue_w(s): e(t, tag)
            nw += 1
        if s < DX:
            for t, tag in issue_x(s): e(t, tag)
            nx += 1

    line_read_addrs(e, V_RD, V_G, V_RR, V_CC, 6, 7)
    for t in range(4): e(f"v_add_u32 v{V_RD+4+t}, 0x10000, v{V_RD+t}")
    e(f"v_lshl_add_u32 v6, v{V_G}, 2, v{V_RR}")
    e(f"v_bfe_u32 v7, v6, 2, 1")
    e(f"v_lshlrev_b32 v32, 6, v6")
    e(f"v_lshl_add_u32 v32, v{V_CC}, 3, v32")
    e(f"v_lshl_add_u32 v{V_RC}, v7, 5, v32")
    e(f"v_xor_b32 v7, 1, v7")
    e(f"v_lshl_add_u32 v32, v7, 5, v32")
    e(f"v_min_u32 v33, 2, v{V_CC}")
    e(f"v_lshl_add_u32 v{V_RC+1}, v33, 11, v32")
    e(f"v_lshlrev_b32 v32, 5, v6")
    e(f"v_lshl_add_u32 v{V_RC+2}, v{V_CC}, 3, v32")
    for t in range(3): e(f"v_add_u32 v{V_RC+3+t}, 0x10000, v{V_RC+t}")
    e(f"s_cmp_lt_u32 s{S_W}, 3")
    e(f"s_cbranch_scc0 L_{name}_w3")
    srd(e, SRD_A, 44, N_WQKV)
    srd(e, SRD_B, 44, N_WQKV, 4 * 3456 - 1024)
    e(f"s_mul_i32 s{S_OFFC}, s{S_W}, 1152")
    e(f"s_mul_i32 s42, s{S_C}, 36")
    e(f"s_add_u32 s{S_OFFC}, s{S_OFFC}, s42")
    e(f"s_mov_b32 s{S_STEPC}, {32*3456}")
    e(f"v_lshrrev_b32 v6, 2, v{V_LANE}")
    kappa(e, 7, 6, 32)
    e(f"v_mul_u32_u24 v7, 3456, v7")
    e(f"v_bfe_u32 v32, v6, 2, 1")
    e(f"v_lshlrev_b32 v32, 1, v32")
    e(f"v_xor_b32 v32, v32, v{V_CC}")
    e(f"s_cmp_eq_u32 s{S_W}, 1")
    e(f"s_cselect_b32 s42, 24, 32")
    e(f"s_cmp_eq_u32 s{S_W}, 2")
    e(f"s_cselect_b32 s43, 3, 2")
    e(f"v_lshlrev_b32 v33, 4, v32")
    e(f"v_mov_b32 v34, {OOB}")
    e(f"v_mov_b32 v35, s42")
    e(f"v_cmp_gt_u32 vcc, 2, v32")
    e(f"v_cndmask_b32 v33, v34, v33, vcc")
    e(f"v_cmp_eq_u32 vcc, s43, v32")
    e(f"v_cndmask_b32 v33, v33, v35, vcc")
    e(f"v_add_u32 v{V_DC}, v7, v33")
    e(f"s_branch L_{name}_wj")
    e.label(f"L_{name}_w3")
    srd(e, SRD_A, 48, N_WF)
    srd(e, SRD_B, 50, N_WF, -1024)
    e(f"s_mov_b32 s{S_OFFC}, s43")
    e(f"s_mov_b32 s{S_STEPC}, {32*9216}")
    e(f"v_lshrrev_b32 v6, 1, v{V_LANE}")
    kappa(e, 7, 6, 32)
    e(f"v_mul_u32_u24 v7, 9216, v7")
    e(f"v_and_b32 v32, 1, v{V_LANE}")
    e(f"v_lshl_add_u32 v{V_DC}, v32, 4, v7")
    e.label(f"L_{name}_wj")
    e(f"s_lshl_b32 s42, s{S_RB}, 3")
    e(f"s_add_u32 s42, s42, s{S_J}")
    e(f"s_lshl_b32 s42, s42, 2")
    e(f"s_add_u32 s42, s42, s{S_W}")
    e(f"s_mul_i32 s42, s42, 73728")
    e(f"s_add_u32 s42, s42, {HF}")
    e(f"s_lshl_b32 s43, s{S_I}, 14")
    e(f"s_add_u32 s{S_H0}, s42, s43")
    e(f"s_add_u32 s{S_H1}, s{S_H0}, 4096")
    e(f"s_lshr_b32 s43, s{S_I}, 1")
    e(f"s_add_u32 s43, s43, 16")
    e(f"s_lshl_b32 s43, s43, 12")
    e(f"s_add_u32 s{S_HQ}, s42, s43")
    e(f"s_and_b32 s43, s{S_I}, 1")
    e(f"s_lshl_b32 s43, s43, 9")
    e(f"s_add_u32 s{S_HQ}, s{S_HQ}, s43")
    e(f"s_mul_i32 s42, s{S_C}, {KV_HEAD}")
    e(f"s_lshr_b32 s43, s{S_RB}, 1")
    e(f"s_mul_i32 s43, s43, {KV_CHUNK}")
    e(f"s_add_u32 s42, s42, s43")
    e(f"s_add_u32 s42, s42, {KV}")
    e(f"s_and_b32 s43, s{S_RB}, 1")
    e(f"s_lshl_b32 s43, s43, 2")
    e(f"s_add_u32 s43, s43, s{S_W}")
    e(f"s_lshl_b32 s52, s43, 11")
    e(f"s_add_u32 s{S_KV}, s42, s52")
    e(f"s_lshl_b32 s52, s43, 8")
    e(f"s_add_u32 s52, s52, s42")
    e(f"s_add_u32 s52, s52, {KV_K1}")
    e(f"s_mul_i32 s53, s43, {4*VT_GRP}")
    e(f"s_add_u32 s53, s53, s42")
    e(f"s_add_u32 s53, s53, {KV_VT}")
    e(f"s_lshl_b32 s42, s{S_C}, 3")
    e(f"s_add_u32 s42, s42, s{S_RB}")
    e(f"s_lshl_b32 s42, s42, 2")
    e(f"s_add_u32 s42, s42, s{S_W}")
    e(f"s_mul_i32 s42, s42, {QF_STRIDE}")
    e(f"s_add_u32 s{S_Q}, s42, {QF}")
    e(f"s_add_u32 s42, s{S_Q}, 2048")
    e(f"s_mov_b32 s{S_QS}, {f32(QSCALE)}")
    e(f"v_and_b32 v6, 15, v{V_LANE}")
    e(f"v_mov_b32 v7, {OOB}")
    e(f"v_mov_b32 v32, s42")
    e(f"v_mov_b32 v33, s52")
    e(f"v_cmp_eq_u32 vcc, 1, v{V_G}")
    e(f"v_cndmask_b32 v33, v7, v33, vcc")
    e(f"v_cmp_eq_u32 vcc, 0, v{V_G}")
    e(f"v_cndmask_b32 v33, v33, v32, vcc")
    e(f"v_lshl_add_u32 v{V_AQK}, v6, 3, v33")
    e(f"v_mov_b32 v32, 1.0")
    e(f"v_mov_b32 v33, s{S_QS}")
    e(f"v_cndmask_b32 v{V_ESC}, v32, v33, vcc")
    e(f"v_lshrrev_b32 v32, 3, v6")
    e(f"v_mul_u32_u24 v32, {VT_HALF}, v32")
    e(f"v_and_b32 v33, 7, v6")
    e(f"v_lshl_add_u32 v32, v33, 1, v32")
    e(f"v_add_u32 v32, s53, v32")
    e(f"v_add_u32 v33, {16*16}, v32")
    e(f"v_add_u32 v34, {18*16}, v32")
    e(f"v_add_u32 v35, {17*16}, v32")
    e(f"v_cmp_eq_u32 vcc, 2, v{V_G}")
    e(f"v_cndmask_b32 v{V_AV0}, v7, v33, vcc")
    e(f"v_cndmask_b32 v{V_AV1}, v7, v35, vcc")
    e(f"v_cmp_eq_u32 s[{S_MASK3}:{S_MASK3+1}], 3, v{V_G}")
    e(f"v_cndmask_b32 v{V_AV0}, v{V_AV0}, v34, s[{S_MASK3}:{S_MASK3+1}]")
    e(f"v_and_b32 v32, 1, v{V_G}")
    e(f"v_mul_u32_u24 v32, {VT_GRP}, v32")
    e(f"v_lshrrev_b32 v33, 1, v{V_G}")
    e(f"v_mul_u32_u24 v33, {VT_HALF}, v33")
    e(f"v_add3_u32 v32, v32, v33, s53")
    e(f"v_lshl_add_u32 v{V_AVM}, v6, 4, v32")
    e(f"v_mov_b32 v31, 0x3f803f80")

    frags = []
    def order(nt, group):
        o = []
        groups = [list(range(a, min(a + group, nt))) for a in range(0, nt, group)]
        for gr in groups:
            for s in range(stagger):
                o += [(s, t) for t in gr]
        for s in range(stagger, 18 - stagger):
            o += [(s, t) for t in range(nt)]
        for gr in groups:
            for s in range(18 - stagger, 18):
                o += [(s, t) for t in gr]
        return o
    for p, nt in ((0, 8), (1, 6), (2, 8)):
        for s, t in order(nt, 2):
            frags.append((p, 18 * p + s, t, s))
    def rd(p, n, t, half):
        slot = (n % NS) * 8192
        hi = slot >= 65536
        base = slot - (65536 if hi else 0)
        if p != 1:
            return V_RD + 4 * hi + (t >> 1), base + (t & 1) * 1024 + half * 4096
        if t < 2: return V_RC + 3 * hi + 2, base + 6144 + t * 1024 + half * 512
        if t == 5: return V_RC + 3 * hi + 1, base + half * 1024
        return V_RC + 3 * hi, base + (t - 2) * 2048 + half * 1024
    acc = lambda t, tt: V_ACC + 16 * t + 4 * tt
    st = Stream(e)
    nf = len(frags)
    first_mf = {}; last_mf = {}
    for i, (p, n, t, s) in enumerate(frags):
        w = V_W + 4 * (i % NBUF)
        for tt in range(4):
            d = R(acc(t, tt), 4); c = "0" if s == 0 else d
            if p == 1 and t == 4: k = st.mfma(f"v_mfma_f32_16x16x32_bf16 {d}, {R(XR(s,tt),4)}, {R(w,4)}, {c}")
            else: k = st.mfma(f"v_mfma_f32_16x16x32_bf16 {d}, {R(w,4)}, {R(XR(s,tt),4)}, {c}")
            if s == 0: first_mf[(p, t, tt)] = k
            if s == 17: last_mf[(p, t, tt)] = k
    def read_frag(i, half):
        p, n, t, s = frags[i]
        a, off = rd(p, n, t, half)
        w = V_W + 4 * (i % NBUF) + 2 * half
        return f"ds_read_b64_tr_b16 {R(w,2)}, v{a} offset:{off}", ("f", i)
    first_use = {}; last_use = {}
    for i, (p, n, t, s) in enumerate(frags):
        first_use.setdefault(n, i); last_use[n] = i
    LOOK = NBUF - 1
    ready = -1
    state = {"nw": nw, "nx": nx}
    def sync(upto):
        e.wait(vm=[("w", n) for n in range(upto + 1)])
        e("s_barrier")
    sync(BK - 1); ready = BK - 1
    for i in range(LOOK):
        assert frags[i][1] <= ready
        for h in range(2): e(*read_frag(i, h))
    xseen = set()
    for i, (p, n, t, s) in enumerate(frags):
        m0 = 4 * i
        if p == 0 and s not in xseen:
            xseen.add(s)
            st.before(m0, lambda s=s: e.wait(vm=[("x", s)]))
            if state["nx"] < 18:
                for t_, tag in issue_x(state["nx"]): st.side(m0 + 1, 10 ** 9, t_, tag)
                state["nx"] += 1
        st.before(m0, lambda i=i: e.wait(lg=[("f", i)]))
        j = i + LOOK
        if j < nf:
            if frags[j][1] > ready:
                up = min(53, max(frags[j][1], ready + BK))
                st.before(m0, lambda up=up: sync(up))
                ready = up
                free = [q for q in range(54) if last_use[q] <= i]
                lim = (max(free) if free else -1)
                while state["nw"] < 54 and state["nw"] - NS <= lim and all(last_use[q] <= i for q in range(state["nw"] - NS + 1)) and state["nw"] <= up + DW:
                    for t_, tag in issue_w(state["nw"]): st.side(m0 + 1, 10 ** 9, t_, tag)
                    state["nw"] += 1
            for h in range(2): st.after(m0 + h, *read_frag(j, h))
        if s == 17:
            nxt = lambda tiles: min([first_mf.get((p + 1, t_, tt), 10 ** 9) for t_ in tiles for tt in range(4)])
            ear = m0 + 3 + 2
            if p != 1 and t % 2 == 1:
                pr = t >> 1; dl = nxt([t - 1, t])
                T = V_T + 16 * ((pr >> 1) & 1)
                for tt in range(4):
                    g_, u_ = acc(t - 1, tt), acc(t, tt)
                    for r in range(4): st.side(ear, dl, f"v_mul_f32 v{g_+r}, v{g_+r}, v{u_+r}")
                    for r in range(2): st.side(ear, dl, f"v_cvt_pk_bf16_f32 v{T+4*tt+2*(pr&1)+r}, v{g_+2*r}, v{g_+2*r+1}")
                    if pr & 1:
                        so = S_H0 if pr == 1 else S_H1
                        st.side(ear, 10 ** 9, f"buffer_store_dwordx4 {R(T+4*tt,4)}, v{V_L16}, s[{SRD_WS}:{SRD_WS+3}], s{so} offen offset:{tt*1024}", "st")
                if pr == 3 and p == 0:
                    st.side(ear, 10 ** 9, f"s_add_u32 s{S_H0}, s{S_H0}, 8192")
                    st.side(ear, 10 ** 9, f"s_add_u32 s{S_H1}, s{S_H1}, 8192")
            if p == 1:
                dl = nxt([t - 1, t] if t == 1 else [t])
                ws = f"s[{SRD_WS}:{SRD_WS+3}]"
                if t == 1:
                    T = V_T
                    for tt in range(4):
                        g_, u_ = acc(0, tt), acc(1, tt)
                        for r in range(4): st.side(ear, dl, f"v_mul_f32 v{g_+r}, v{g_+r}, v{u_+r}")
                        for r in range(2): st.side(ear, dl, f"v_cvt_pk_bf16_f32 v{T+2*tt+r}, v{g_+2*r}, v{g_+2*r+1}")
                        st.side(ear, 10 ** 9, f"buffer_store_dwordx2 {R(T+2*tt,2)}, v{V_L8}, {ws}, s{S_HQ} offen offset:{tt*1024}", "st")
                elif t in (2, 3, 4):
                    T = V_T + 8 * (t - 1)
                    for tt in range(4):
                        a_ = acc(t, tt)
                        if t == 2:
                            for r in range(4): st.side(ear, dl, f"v_mul_f32 v{a_+r}, s{S_QS}, v{a_+r}")
                        for r in range(2): st.side(ear, dl, f"v_cvt_pk_bf16_f32 v{T+2*tt+r}, v{a_+2*r}, v{a_+2*r+1}")
                    for pr in range(2):
                        for r in range(2): st.side(ear, 10 ** 9, f"v_permlane16_swap_b32 v{T+4*pr+r}, v{T+4*pr+2+r}")
                    for pr in range(2):
                        if t == 2: x = f"v{V_L16}, {ws}, s{S_Q} offen offset:{pr*1024}"
                        elif t == 3: x = f"v{V_L16}, {ws}, s{S_KV} offen offset:{pr*1024}"
                        else: x = f"v{V_AVM}, {ws}, 0 offen offset:{pr*2*VT_GRP}"
                        st.side(ear, 10 ** 9, f"buffer_store_dwordx4 {R(T+4*pr,4)}, {x}", "st")
                elif t == 5:
                    T = V_T
                    pos = [0, 2, 1, 3]
                    for tt in range(4):
                        a_ = acc(5, tt)
                        for r in range(2): st.side(ear, dl, f"v_mul_f32 v{a_+r}, v{V_ESC}, v{a_+r}")
                        st.side(ear, dl, f"v_cvt_pk_bf16_f32 v{T+pos[tt]}, v{a_}, v{a_+1}")
                        st.side(ear, dl, f"v_cndmask_b32 v{T+pos[tt]}, v{T+pos[tt]}, v31, s[{S_MASK3}:{S_MASK3+1}]")
                    for pr in range(2):
                        st.side(ear, 10 ** 9, f"buffer_store_dwordx2 {R(T+2*pr,2)}, v{V_AQK}, {ws}, 0 offen offset:{pr*128}", "st")
                    for tt in range(4):
                        st.side(ear, 10 ** 9, f"buffer_store_short v{T+pos[tt]}, v{V_AV0}, {ws}, 0 offen offset:{tt*VT_GRP}", "st")
                        st.side(ear, 10 ** 9, f"buffer_store_short_d16_hi v{T+pos[tt]}, v{V_AV1}, {ws}, 0 offen offset:{tt*VT_GRP}", "st")
    assert state["nw"] == 54 and state["nx"] == 18, state
    st.emit()
    e.label(f"L_{name}_end")
    e("s_endpgm")
    print(f"{name}: {e.count} instrs, {e.nops} nop states")
    return e.text(), kernel_desc(name, 512, 256), NS * 8192
```

```python
from common import *

V_LANE, V_G, V_RR, V_CC, V_I = 1, 2, 3, 4, 5
V_RD = 8
V_RQ = 12
V_DM, V_DE, V_DQM, V_DQE = 14, 16, 18, 19
V_L16, V_L8Q, V_AO, V_AOE, V_AX, V_AXQ, V_RED = 20, 21, 22, 23, 24, 25, 26
V_T = 28
V_W = 32
V_ACC = 48
V_B = 84
V_X = 120
V_P = 140
S_W, S_TP, S_NT, S_TT, S_KH = 3, 4, 5, 6, 7
SRD_WS, SRD_A, SRD_B, SRD_X, SRD_O = 8, 12, 16, 20, 24

def gen_p3(name="p3_kernel", NBUF=4):
    e = Emitter()
    NS = 7
    QB = NS * 16384
    ws = f"s[{SRD_WS}:{SRD_WS+3}]"
    kernel_head(e, name)
    e("s_cmp_ge_u32 s2, 256")
    e(f"s_cbranch_scc1 L_{name}_end")
    e(f"s_load_dwordx2 s[44:45], s[0:1], {KA['wo']}")
    e(f"s_load_dwordx2 s[46:47], s[0:1], {KA['ws']}")
    e(f"s_load_dwordx2 s[48:49], s[0:1], {KA['x']}")
    e(f"s_load_dwordx2 s[50:51], s[0:1], {KA['out']}")
    e("v_lshrrev_b32 v6, 6, v0")
    lane_fields(e, V_LANE, V_G, V_RR, V_CC)
    e(f"v_readfirstlane_b32 s{S_W}, v6")
    e(f"v_and_b32 v{V_I}, 15, v{V_LANE}")
    e(f"s_lshr_b32 s42, s2, 5")
    e(f"s_lshl_b32 s42, s42, 3")
    e(f"s_and_b32 s43, s2, 7")
    e(f"s_add_u32 s{S_TP}, s42, s43")
    e(f"s_bfe_u32 s{S_NT}, s2, 0x20003")
    e(f"s_and_b32 s{S_TT}, s{S_W}, 1")
    e(f"s_lshr_b32 s{S_KH}, s{S_W}, 1")
    e(f"v_lshlrev_b32 v{V_L16}, 4, v{V_LANE}")
    e(f"v_lshlrev_b32 v6, 3, v{V_LANE}")
    e(f"v_add_u32 v{V_L8Q}, 4096, v6")
    def rows(rho, dm, de):
        e(f"v_bfe_u32 v28, v{rho}, 3, 1"); e(f"v_mul_u32_u24 v{dm}, 18, v28")
        e(f"v_lshrrev_b32 v28, 4, v{rho}"); e(f"v_lshl_add_u32 v{dm}, v28, 3, v{dm}")
        e(f"v_and_b32 v29, 7, v{rho}"); e(f"v_add_u32 v{dm}, v{dm}, v29")
        e(f"v_bfe_u32 v29, v{rho}, 2, 2"); e(f"v_lshlrev_b32 v29, 2, v29")
        e(f"v_lshl_add_u32 v29, v28, 1, v29"); e(f"v_bfe_u32 v28, v{rho}, 1, 1"); e(f"v_add_u32 v29, v29, v28")
        e(f"v_mul_u32_u24 v{de}, 18, v29"); e(f"v_and_b32 v28, 1, v{rho}"); e(f"v_add3_u32 v{de}, v{de}, v28, 16")
    e(f"s_lshl_b32 s42, s{S_TT}, 4")
    for a in range(2):
        e(f"v_lshrrev_b32 v6, 3, v{V_LANE}")
        e(f"v_add3_u32 v6, v6, s42, {8*a}")
        rows(6, V_DM + a, V_DE + a)
        e(f"v_and_b32 v28, 6, v6"); e(f"v_and_b32 v29, 7, v{V_LANE}"); e(f"v_xor_b32 v7, v28, v29")
        e(f"v_lshlrev_b32 v7, 4, v7")
        if a: e(f"v_subrev_u32 v7, 2048, v7")
        for r in (V_DM + a, V_DE + a):
            e(f"v_mul_u32_u24 v{r}, 1152, v{r}"); e(f"v_add_u32 v{r}, v{r}, v7")
    e(f"v_lshrrev_b32 v6, 1, v{V_LANE}")
    rows(6, V_DQM, V_DQE)
    e(f"v_and_b32 v7, 1, v{V_LANE}"); e(f"v_lshlrev_b32 v7, 4, v7")
    for r in (V_DQM, V_DQE):
        e(f"v_mul_u32_u24 v{r}, 1152, v{r}"); e(f"v_add_u32 v{r}, v{r}, v7")
    e(f"s_mul_i32 s42, s{S_KH}, {288*1152}")
    e(f"s_lshl_b32 s43, s{S_NT}, 8")
    e(f"s_add_u32 s28, s42, s43")
    e(f"s_mov_b32 s35, s28")
    e(f"s_lshl_b32 s43, s{S_NT}, 5")
    e(f"s_add_u32 s29, s42, s43")
    e(f"s_add_u32 s29, s29, 1024")
    e(f"s_mul_i32 s43, s{S_TT}, {36*1152}")
    e(f"s_add_u32 s30, s29, s43")
    e(f"s_lshl_b32 s31, s{S_KH}, 13")
    e(f"s_lshl_b32 s43, s{S_TT}, 12")
    e(f"s_add_u32 s31, s31, s43")
    e(f"s_mul_i32 s32, s{S_KH}, 10240")
    e(f"s_lshl_b32 s43, s{S_TT}, 10")
    e(f"s_add_u32 s32, s32, s43")
    e(f"s_add_u32 s32, s32, {QB}")
    e(f"v_lshrrev_b32 v6, 1, v{V_G}"); e(f"v_lshlrev_b32 v6, 16, v6")
    e(f"v_and_b32 v7, 1, v{V_G}"); e(f"v_lshl_add_u32 v6, v7, 9, v6")
    e(f"v_lshl_add_u32 v{V_AO}, v{V_I}, 4, v6")
    e(f"v_lshlrev_b32 v6, 15, v{V_G}"); e(f"v_lshl_add_u32 v{V_AOE}, v{V_I}, 2, v6")
    e(f"s_lshl_b32 s33, s{S_KH}, 20")
    e(f"s_lshl_b32 s43, s{S_TP}, 10"); e(f"s_add_u32 s33, s33, s43")
    e(f"s_lshl_b32 s43, s{S_TT}, 8"); e(f"s_add_u32 s33, s33, s43")
    e(f"s_add_u32 s33, s33, {OF0}")
    e(f"s_lshl_b32 s42, s{S_TP}, 1"); e(f"s_add_u32 s42, s42, s{S_TT}")
    e(f"s_lshl_b32 s34, s{S_KH}, 17")
    e(f"s_lshl_b32 s43, s42, 6"); e(f"s_add_u32 s34, s34, s43")
    e(f"s_add_u32 s34, s34, {OF1}")
    e(f"s_lshl_b32 s43, s42, 4")
    e(f"v_add_u32 v6, s43, v{V_I}"); e(f"v_mul_u32_u24 v6, 1152, v6"); e(f"v_lshl_add_u32 v6, v{V_G}, 3, v6")
    e(f"s_lshl_b32 s43, s{S_NT}, 8"); e(f"v_add_u32 v{V_AX}, s43, v6")
    e(f"s_lshl_b32 s43, s{S_NT}, 5"); e(f"s_add_u32 s43, s43, 1024"); e(f"v_add_u32 v{V_AXQ}, s43, v6")
    e(f"s_lshl_b32 s43, s{S_KH}, 9"); e(f"s_add_u32 s42, s42, s43")
    e(f"s_lshl_b32 s42, s42, 2"); e(f"s_add_u32 s42, s42, s{S_NT}")
    e(f"s_mul_i32 s36, s42, 4608"); e(f"s_add_u32 s36, s36, {PF}")
    e.wait(lg="all")
    srd(e, SRD_WS, 46, WS_SIZE)
    srd(e, SRD_A, 44, N_WO)
    srd(e, SRD_B, 44, N_WO, 128 - 1024)
    srd(e, SRD_X, 48, N_X)
    srd(e, SRD_O, 50, N_X)
    A, B = f"s[{SRD_A}:{SRD_A+3}]", f"s[{SRD_B}:{SRD_B+3}]"
    def issue_w(u):
        if u % 2 == 0:
            e(f"s_add_u32 m0, s32, {u*1024}")
            if u < 8:
                e(f"buffer_load_dwordx4 v{V_DQM}, {A}, s30 offen lds", ("w", u))
                e(f"s_add_u32 s30, s30, {72*1152}")
            else: e(f"buffer_load_dwordx4 v{V_DQE}, {A}, s29 offen lds", ("w", u))
        e(f"s_add_u32 m0, s31, {(u % NS)*16384}")
        d, so = (V_DM, 28) if u < 8 else (V_DE, 35)
        for a in range(2):
            e(f"buffer_load_dwordx4 v{d+a}, {A}, s{so} offen offset:{a*2048} lds", ("w", u))
            e(f"buffer_load_dwordx4 v{d+a}, {B}, s{so} offen offset:{a*2048+1024} lds", ("w", u))
        if u < 7: e(f"s_add_u32 s28, s28, {36*1152}")
    def issue_b(u):
        if u < 8:
            e(f"buffer_load_dwordx4 {R(V_B+4*u,4)}, v{V_AO}, {ws}, s33 offen", ("b", u))
            e(f"s_add_u32 s33, s33, 131072")
        else:
            for jj in range(4):
                e(f"buffer_load_dword v{V_B+32+jj}, v{V_AOE}, {ws}, s34 offen", ("b", u))
                e(f"s_add_u32 s34, s34, 8192")
    def issue_p(j):
        for pr in range(4): e(f"buffer_load_dwordx4 {R(V_P+18*j+4*pr,4)}, v{V_L16}, {ws}, s36 offen offset:{pr*1024}", ("p", j))
        e(f"buffer_load_dwordx2 {R(V_P+18*j+16,2)}, v{V_L8Q}, {ws}, s36 offen", ("p", j))
        e(f"s_add_u32 s36, s36, {128*4*4608}")
    for u in range(NS):
        issue_w(u); issue_b(u)
    issue_b(7); issue_b(8)
    line_read_addrs(e, V_RD, V_G, V_RR, V_CC, 6, 7)
    e(f"s_lshl_b32 s42, s{S_KH}, 13")
    for t in range(4): e(f"v_add_u32 v{V_RD+t}, s42, v{V_RD+t}")
    e(f"v_lshl_add_u32 v6, v{V_G}, 2, v{V_RR}"); e(f"v_lshlrev_b32 v6, 5, v6"); e(f"v_lshl_add_u32 v6, v{V_CC}, 3, v6")
    e(f"s_mul_i32 s42, s{S_KH}, 10240"); e(f"s_add_u32 s42, s42, {QB}")
    e(f"v_add_u32 v{V_RQ}, s42, v6")
    e(f"s_mul_i32 s42, s{S_TT}, 9216")
    e(f"v_add_u32 v{V_RED}, s42, v{V_L16}")
    e("s_mov_b32 s37, 0xffff0000")
    frags = [(u, t) for u in range(9) for t in range(9)]
    hi = {"on": False}
    def read_frag(i):
        u, t = frags[i]
        w = V_W + 4 * (i % NBUF)
        for h in range(2):
            if t == 8: a, off = V_RQ, u * 1024 + h * 512
            else:
                slot = (u % NS) * 16384
                a, off = V_RD + (t & 3), slot + (t >> 2) * 1024 + h * 4096
                want = slot >= 49152
                if want != hi["on"]:
                    for k in range(4): e(f"v_add_u32 v{V_RD+k}, {49152 if want else -49152 & 0xffffffff}, v{V_RD+k}")
                    hi["on"] = want
                if want: off -= 49152
            e(f"ds_read_b64_tr_b16 {R(w+2*h,2)}, v{a} offset:{off}", ("f", i))
    LOOK = NBUF - 1
    e.wait(vm=[("w", 0)]); e("s_barrier")
    for i in range(LOOK): read_frag(i)
    nextw = NS; np_ = 0
    for i, (u, t) in enumerate(frags):
        if t == 0: e.wait(vm=[("b", u)])
        e.wait(lg=[("f", i)])
        j = i + LOOK
        if j < len(frags) and frags[j][1] == 0:
            e.wait(vm=[("w", frags[j][0])]); e("s_barrier")
            if nextw < 9 and nextw - NS < u:
                issue_w(nextw); nextw += 1
            if np_ < 4 and u >= 1:
                issue_p(np_); np_ += 1
            if u == 5:
                for t_ in range(8): e(f"buffer_load_dwordx2 {R(V_X+2*t_,2)}, v{V_AX}, s[{SRD_X}:{SRD_X+3}], 0 offen offset:{t_*32}", "x")
                e(f"buffer_load_dwordx2 {R(V_X+16,2)}, v{V_AXQ}, s[{SRD_X}:{SRD_X+3}], 0 offen", "x")
        d = R(V_ACC + 4 * t, 4)
        e(f"v_mfma_f32_16x16x32_bf16 {d}, {R(V_W+4*(i%NBUF),4)}, {R(V_B+4*u,4)}, {'0' if u == 0 else d}")
        if j < len(frags): read_frag(j)
    assert nextw == 9 and np_ == 4
    def add_bf16(src, k):
        e(f"v_lshlrev_b32 v28, 16, v{src}"); e(f"v_and_b32 v29, s37, v{src}")
        e(f"v_add_f32 v{V_ACC+2*k}, v{V_ACC+2*k}, v28"); e(f"v_add_f32 v{V_ACC+2*k+1}, v{V_ACC+2*k+1}, v29")
    for j in range(4):
        e.wait(vm=[("p", j)])
        for k in range(18): add_bf16(V_P + 18 * j + k, k)
    e("s_barrier")
    e(f"s_cmp_eq_u32 s{S_KH}, 0")
    e(f"s_cbranch_scc1 L_{name}_lo")
    for t in range(9): e(f"ds_write_b128 v{V_RED}, {R(V_ACC+4*t,4)} offset:{t*1024}")
    e.wait(lg="all")
    e("s_barrier")
    e("s_endpgm")
    e.label(f"L_{name}_lo")
    e.wait(vm=["x"])
    for k in range(18): add_bf16(V_X + k, k)
    e("s_barrier")
    for t in range(9): e(f"ds_read_b128 {R(V_B+4*t,4)}, v{V_RED} offset:{t*1024}", ("r", t))
    for t in range(9):
        e.wait(lg=[("r", t)])
        for r in range(4): e(f"v_add_f32 v{V_ACC+4*t+r}, v{V_ACC+4*t+r}, v{V_B+4*t+r}")
        for r in range(2): e(f"v_cvt_pk_bf16_f32 v{V_X+2*t+r}, v{V_ACC+4*t+2*r}, v{V_ACC+4*t+2*r+1}")
        if t < 8: e(f"buffer_store_dwordx2 {R(V_X+2*t,2)}, v{V_AX}, s[{SRD_O}:{SRD_O+3}], 0 offen offset:{t*32}")
        else: e(f"buffer_store_dwordx2 {R(V_X+2*t,2)}, v{V_AXQ}, s[{SRD_O}:{SRD_O+3}], 0 offen")
    e.label(f"L_{name}_end")
    e("s_endpgm")
    print(f"{name}: {e.count} instrs, {e.nops} nop states")
    return e.text(), kernel_desc(name, 256, 256), QB + 20480
```

```python
import math
S, D, H, DH, F = 2048, 576, 32, 18, 4608
XF = 0x0
HF = 0x240000
KV = 0x1440000
KV_HEAD, KV_CHUNK, KV_K1, KV_VT, VT_GRP, VT_HALF = 151552, 37888, 16384, 18432, 608, 304
QF = 0x18E0000
QF_STRIDE = 2304
OF0 = 0x1B20000
OF1 = 0x1D20000
PF = 0x1D60000
WS_SIZE = 0x3000000
OOB = 0x40000000
N_X, N_WQKV, N_WO, N_WF = S * D * 2, D * 3 * D * 2, D * D * 2, D * F * 2
QSCALE = DH ** -0.5 * math.log2(math.e)
KA = dict(x=0, wqkv=8, wo=16, bx=24, wg=32, wu=40, wd=48, out=56, dbg=64, ws=72)
def f32(x):
    import struct
    return "0x%08x" % struct.unpack("<I", struct.pack("<f", x))[0]
FL = 0x2F60000
FL_H, FL_K, FL_P, FL_O = FL, FL + 0x8000, FL + 0x9000, FL + 0xD000
```

```python
from asmx import *
from layout import *

def kernel_head(e, name):
    e.raw(f".globl {name}\n.p2align 8\n.type {name},@function\n{name}:")

def kernel_desc(name, vgpr, acc):
    return f""".amdhsa_kernel {name}
  .amdhsa_next_free_vgpr {vgpr}
  .amdhsa_next_free_sgpr 102
  .amdhsa_accum_offset {acc}
  .amdhsa_group_segment_fixed_size 0
  .amdhsa_kernarg_size 80
  .amdhsa_user_sgpr_count 2
  .amdhsa_user_sgpr_kernarg_segment_ptr 1
  .amdhsa_system_sgpr_workgroup_id_x 1
.end_amdhsa_kernel
"""

def srd(e, d, ptr, size, delta=0):
    if delta > 0:
        e(f"s_add_u32 s{d}, s{ptr}, {delta}"); e(f"s_addc_u32 s{d+1}, s{ptr+1}, 0")
    elif delta < 0:
        e(f"s_sub_u32 s{d}, s{ptr}, {-delta}"); e(f"s_subb_u32 s{d+1}, s{ptr+1}, 0")
    else:
        e(f"s_mov_b32 s{d}, s{ptr}"); e(f"s_mov_b32 s{d+1}, s{ptr+1}")
    e(f"s_mov_b32 s{d+2}, {size - delta}")
    e(f"s_mov_b32 s{d+3}, 0x20000")

class Stream:
    def __init__(self, e, cap=2):
        self.e = e; self.mf = []; self.pre = {}; self.post = {}; self.queue = []; self.cap = cap
    def mfma(self, text):
        self.mf.append(text); return len(self.mf) - 1
    def before(self, i, fn): self.pre.setdefault(i, []).append(fn)
    def after(self, i, text, tag=None): self.post.setdefault(i, []).append((text, tag))
    def side(self, earliest, deadline, text, tag=None): self.queue.append((earliest, deadline, text, tag))
    def cost(self, text):
        if callable(text): return 0
        if text.startswith("s_"): return 0
        if "store" in text: return 2
        return 1
    def emit(self):
        e = self.e; q = self.queue; qi = 0
        def put(text, tag):
            if callable(text): text()
            else: e(text, tag)
        for i, m in enumerate(self.mf):
            last = max([k for k in range(qi, len(q)) if q[k][1] <= i], default=-1)
            while qi <= last:
                put(q[qi][2], q[qi][3]); qi += 1
            for fn in self.pre.get(i, []): fn()
            e(m)
            used = 0
            for text, tag in self.post.get(i, []):
                put(text, tag); used += self.cost(text)
            while qi < len(q) and q[qi][0] <= i and used + self.cost(q[qi][2]) <= self.cap:
                put(q[qi][2], q[qi][3]); used += self.cost(q[qi][2]); qi += 1
        while qi < len(q):
            put(q[qi][2], q[qi][3]); qi += 1

def lane_fields(e, lane, g, rr, cc):
    e(f"v_and_b32 v{lane}, 63, v0")
    e(f"v_lshrrev_b32 v{g}, 4, v{lane}")
    e(f"v_bfe_u32 v{rr}, v{lane}, 2, 2")
    e(f"v_and_b32 v{cc}, 3, v{lane}")

def line_read_addrs(e, dst, g, rr, cc, t0, t1):
    e(f"v_lshl_add_u32 v{t0}, v{g}, 2, v{rr}")
    e(f"v_lshrrev_b32 v{t1}, 3, v{t0}")
    e(f"v_lshlrev_b32 v{t1}, 11, v{t1}")
    e(f"v_and_b32 v{dst}, 7, v{t0}")
    e(f"v_lshl_add_u32 v{t1}, v{dst}, 7, v{t1}")
    e(f"v_lshl_add_u32 v{t1}, v{cc}, 3, v{t1}")
    e(f"v_bfe_u32 v{t0}, v{t0}, 1, 2")
    for t in range(4):
        e(f"v_xor_b32 v{dst+t}, {t}, v{t0}")
        e(f"v_lshl_add_u32 v{dst+t}, v{dst+t}, 5, v{t1}")

def kappa(e, dst, rho, t):
    e(f"v_bfe_u32 v{dst}, v{rho}, 2, 2")
    e(f"v_lshlrev_b32 v{dst}, 3, v{dst}")
    e(f"v_lshrrev_b32 v{t}, 4, v{rho}")
    e(f"v_lshl_add_u32 v{dst}, v{t}, 2, v{dst}")
    e(f"v_and_b32 v{t}, 3, v{rho}")
    e(f"v_add_u32 v{dst}, v{dst}, v{t}")


DIAG = 0x3000000
class Diag:
    def __init__(self, e, on, kidx):
        self.e, self.on, self.k, self.n = e, on, kidx, 0
    def stamp(self):
        if not self.on: return
        assert self.n < 15
        self.e(f"s_memrealtime s[{64+2*self.n}:{65+2*self.n}]"); self.n += 1
    def cyc(self):
        if not self.on: return
        self.e(f"s_memtime s[{64+2*self.n}:{65+2*self.n}]"); self.n += 1
    def flush(self, wsptr, wave):
        if not self.on: return
        e = self.e
        self.stamp()
        e.wait(vm="all", lg="all")
        e(f"s_mov_b32 s96, s{wsptr}"); e(f"s_mov_b32 s97, s{wsptr+1}"); e(f"s_mov_b32 s98, {DIAG + 0x400000}"); e("s_mov_b32 s99, 0x20000")
        e("s_lshl_b32 s100, s2, 2")
        if wave is not None: e(f"s_add_u32 s100, s100, s{wave}")
        e("s_lshl_b32 s100, s100, 6")
        e(f"s_add_u32 s100, s100, {DIAG + self.k * 0x10000}")
        e("v_mov_b32 v0, s100")
        for i in range(self.n):
            e(f"v_mov_b32 v1, s{64+2*i}")
            e(f"buffer_store_dword v1, v0, s[96:99], 0 offen offset:{4*i}")
        e.wait(vm="all")
```

```python
from common import *

NAME = "parallel_sum__mha_block__glu_gated_bilinear__prompt_kernel"
BIG = 10 ** 9
V_L16, V_L8, V_L8Q, V_L4, V_F0, V_PD, V_DG = 1, 2, 3, 4, 5, 6, 7
V_RD, V_RC, V_RQ = 8, 16, 22
V_DAB, V_DC, V_DD, V_DQ = 23, 24, 25, 26
V_AK1, V_AV0, V_AV1, V_AVM, V_ESC = 27, 28, 29, 30, 31
V_T, V_W = 32, 64
V_Q0, V_Q1 = 80, 88
V_ACC = 96
def XR(s, tt): return 256 + 16 * s + 4 * tt if s < 16 else 224 + 16 * (s - 16) + 4 * tt
def HR(o, tt): return 256 + 16 * (o % 16) + 4 * tt
def ACC(t, tt): return V_ACC + 16 * t + 4 * tt
A_S, A_O = 96, 160
A_K0, A_VA, A_VB, A_K1, A_IDX = 192, 196, 200, 204, 206
A_AK0, A_AK1, A_AV = 208, 210, 212
A_AO1, A_GV = 214, 215
A_M = 224
F_DM, F_DE, F_DQM, F_DQE, F_RQ = 16, 17, 18, 19, 20
F_AO, F_AOE, F_AX, F_AXQ, F_AP, F_APQ = 21, 22, 23, 24, 25, 26
F_P = 256
F_X = 216
S_W, S_RB, S_C, S_J, S_I = 3, 4, 5, 6, 7
SRD_WS, SRD_G, SRD_U, SRD_CA, SRD_CB, SRD_DA, SRD_DB, SRD_X, SRD_DBG = 8, 12, 16, 20, 24, 28, 32, 36, 40
SRD_WO, SRD_OUT = 12, 16
P_DBG, P_WS, P_X, P_WQKV, P_WO, P_WG, P_WU, P_WD, P_OUT = 44, 46, 48, 50, 52, 56, 58, 60, 62
S_M0, S_OFFAB, S_COLB, S_OFFC, S_STEPC, S_XOFF = 64, 65, 66, 67, 68, 69
S_H0, S_H1, S_HQ, S_KV, S_QS = 70, 71, 72, 73, 74
S_OFFD, S_OFFDQ, S_M0Q, S_HB, S_HO = 75, 76, 77, 78, 79
S_P = 80
S_FH, S_FK, S_FP, S_FO = 84, 85, 86, 87
S_GH, S_GK, S_GP, S_GO = 88, 89, 90, 91
S_MASK3 = 92
S_A, S_B, S_CNT = 94, 95, 96
S_KVS, S_M0J = 54, 55
NS = 16
L_DQ = NS * 8192
L_WOQ = 73728
L_X = (86016, 123904)
L_JUNK = 161792
L_RED = 162816
LDS_BYTES = 163840
SPIN_MAX = 1 << 17
sr = lambda n: f"s[{n}:{n+3}]"

class Gen:
    def __init__(self, diag=False, DW=14, DX=8, HL=8, BK=2, NBUF=4, stagger=2, code_kb=64, cap=2):
        self.e = Emitter(); self.diag = diag; self.nst = 0
        self.DW, self.DX, self.HL, self.BK, self.NBUF, self.stagger, self.code_kb, self.cap = DW, DX, HL, BK, NBUF, stagger, code_kb, cap
        self.tail = []
        self.npoll = 0
    def stamp(self, cyc=False):
        if not self.diag: return
        e = self.e
        e(f"{'s_memtime' if cyc else 's_memrealtime'} s[98:99]")
        e.wait(lg="all")
        e(f"v_writelane_b32 v{V_DG}, s98, {self.nst}"); self.nst += 1
    def stamp2(self):
        self.stamp(); self.stamp(True)

    def poll_load(self, srdn, voff, soff, tag):
        return (f"buffer_load_dword v{V_PD}, v{voff}, {sr(srdn)}, {soff} offen sc1", tag)
    def poll_check(self, srdn, voff, soff, tag, val, mask):
        e = self.e; n = self.npoll; self.npoll += 1
        e.wait(vm=[tag])
        def test():
            e(f"v_cmp_le_u32 vcc, {val}, v{V_PD}")
            e(f"s_and_b32 s{S_A}, vcc_lo, {mask}")
            e(f"s_cmp_eq_u32 s{S_A}, {mask}")
        test()
        e(f"s_cbranch_scc0 L_spin{n}")
        e.raw(f"L_back{n}:")
        def out():
            e.label(f"L_spin{n}")
            e(f"s_mov_b32 s{S_CNT}, 0")
            e.label(f"L_spinl{n}")
            e(*self.poll_load(srdn, voff, soff, None))
            e(f"s_add_u32 s{S_CNT}, s{S_CNT}, 1")
            e.wait(vm="all")
            e(f"s_cmp_gt_u32 s{S_CNT}, {SPIN_MAX}")
            e(f"s_cbranch_scc1 L_back{n}")
            test()
            e(f"s_cbranch_scc0 L_spinl{n}")
            e(f"s_branch L_back{n}")
        self.tail.append(out)
    def signal(self, sreg, val, tmp):
        return [(f"v_mov_b32 v{tmp}, {val}", None),
                (f"buffer_store_dword v{tmp}, v{V_F0}, {sr(SRD_WS)}, s{sreg} offen sc1", "flag")]

    def setup(self):
        e = self.e
        kernel_head(e, NAME)
        e("s_cmp_ge_u32 s2, 256")
        e("s_cbranch_scc1 L_end")
        e("s_load_dwordx16 s[48:63], s[0:1], 0")
        e("s_load_dwordx4 s[44:47], s[0:1], 64")
        if self.diag: e(f"v_mov_b32 v{V_DG}, 0")
        self.stamp()
        e("v_lshrrev_b32 v32, 6, v0")
        e("v_and_b32 v33, 63, v0")
        e(f"v_readfirstlane_b32 s{S_W}, v32")
        e(f"s_and_b32 s{S_J}, s2, 7")
        e(f"s_lshr_b32 s{S_RB}, s2, 5")
        e(f"s_bfe_u32 s{S_I}, s2, 0x20003")
        e(f"s_lshl_b32 s{S_C}, s{S_J}, 2")
        e(f"s_add_u32 s{S_C}, s{S_C}, s{S_I}")
        e(f"v_lshlrev_b32 v{V_L16}, 4, v33")

    def layernorm_load(self):
        e = self.e
        e("v_lshrrev_b32 v34, 3, v33")
        e("v_and_b32 v35, 7, v33")
        e("v_mul_u32_u24 v36, 1152, v34")
        e("v_lshl_add_u32 v36, v35, 4, v36")
        e(f"s_lshl_b32 s{S_A}, s{S_RB}, 5")
        e(f"s_add_u32 s{S_A}, s{S_A}, s{S_C}")
        e(f"s_mul_i32 s{S_A}, s{S_A}, {8*1152}")
        e(f"s_add_u32 s{S_B}, s{S_A}, 1024")
        e(f"s_lshl_b32 s97, s{S_W}, 7")
        e(f"s_add_u32 s{S_A}, s{S_A}, s97")
        e(f"s_cmp_eq_u32 s{S_W}, 0")
        e(f"s_cselect_b32 s{S_B}, s{S_B}, {OOB}")
        e.wait(lg="all")
        srd(e, SRD_X, P_X, N_X)
        e(f"buffer_load_dwordx4 v[96:99], v36, {sr(SRD_X)}, s{S_A} offen", "ln")
        e(f"buffer_load_dwordx4 v[100:103], v36, {sr(SRD_X)}, s{S_A} offen offset:512", "ln")
        e(f"buffer_load_dwordx4 v[104:107], v36, {sr(SRD_X)}, s{S_B} offen", "ln")
        srd(e, SRD_WS, P_WS, WS_SIZE)
        srd(e, SRD_G, P_WG, N_WF)
        srd(e, SRD_U, P_WU, N_WF, -1024)

    def code_prefetch(self):
        e = self.e
        e("s_getpc_b64 s[98:99]")
        e.raw("L_pc:")
        e(f"s_lshr_b32 s{S_A}, s2, 3")
        e(f"s_lshl_b32 s{S_A}, s{S_A}, 2")
        e(f"s_add_u32 s{S_A}, s{S_A}, s{S_W}")
        e(f"s_min_u32 s{S_A}, s{S_A}, (L_codeend-L_pc-1024)/1024")
        e(f"s_lshl_b32 s{S_A}, s{S_A}, 10")
        e(f"s_add_u32 s98, s98, s{S_A}")
        e("s_addc_u32 s99, s99, 0")
        e(f"global_load_dwordx4 v[108:111], v{V_L16}, s[98:99]", "code")

    def w_addr_ab(self):
        e = self.e
        e("v_lshrrev_b32 v37, 3, v0")
        kappa(e, 38, 37, 39)
        e("v_mul_u32_u24 v38, 9216, v38")
        e("v_and_b32 v39, 6, v37")
        e("v_xor_b32 v39, v39, v35")
        e(f"v_lshl_add_u32 v{V_DAB}, v39, 4, v38")
        e("v_mul_u32_u24 v38, 1152, v37")
        e(f"v_lshl_add_u32 v{V_DD}, v39, 4, v38")
        e(f"s_lshl_b32 s{S_M0}, s{S_W}, 11")
        e(f"s_mul_i32 s{S_OFFAB}, s{S_J}, 1152")
        e(f"s_lshl_b32 s{S_A}, s{S_I}, 8")
        e(f"s_add_u32 s{S_OFFAB}, s{S_OFFAB}, s{S_A}")
        e(f"s_add_u32 s{S_COLB}, s{S_OFFAB}, 128")

    def flags_setup(self):
        e = self.e
        e(f"v_mov_b32 v37, {OOB}")
        e("v_cmp_eq_u32 vcc, 0, v33")
        e(f"v_cndmask_b32 v{V_F0}, v37, 0, vcc")
        e("v_and_b32 v37, 31, v33")
        e(f"v_lshlrev_b32 v{V_L4}, 2, v37")
        def line(dst, terms, base):
            first = True
            for reg, sh in terms:
                if first: e(f"s_lshl_b32 s{dst}, s{reg}, {sh}"); first = False
                else:
                    e(f"s_add_u32 s{dst}, s{dst}, s{reg}")
                    e(f"s_lshl_b32 s{dst}, s{dst}, {sh}")
            e(f"s_add_u32 s{dst}, s{dst}, {base}")
        def member(dst, grp, terms):
            first = True
            for reg, sh in terms:
                if first: e(f"s_lshl_b32 s{S_A}, s{reg}, {sh}"); first = False
                else:
                    e(f"s_add_u32 s{S_A}, s{S_A}, s{reg}")
                    e(f"s_lshl_b32 s{S_A}, s{S_A}, {sh}")
            e(f"s_add_u32 s{dst}, s{grp}, s{S_A}")
        line(S_GH, [(S_RB, 3), (S_J, 2), (S_W, 7)], FL_H); member(S_FH, S_GH, [(S_I, 2)])
        line(S_GK, [(S_C, 7)], FL_K); member(S_FK, S_GK, [(S_RB, 2), (S_W, 2)])
        line(S_FP, [(S_RB, 2), (S_I, 2), (S_W, 7)], FL_P); member(S_FP, S_FP, [(S_J, 2)])
        e(f"s_lshr_b32 s{S_B}, s{S_J}, 1")
        line(S_GP, [(S_RB, 2), (S_B, 2), (S_I, 7)], FL_P)
        line(S_FO, [(S_RB, 2), (S_W, 7)], FL_O); member(S_FO, S_FO, [(S_C, 2)])
        line(S_GO, [(S_RB, 2), (S_I, 7)], FL_O)
        e("v_mov_b32 v37, 0")
        for s in (S_FH, S_FK, S_FP, S_FO):
            e(f"buffer_store_dword v37, v{V_F0}, {sr(SRD_WS)}, s{s} offen sc1", "clr")

    def layernorm(self):
        e = self.e
        X, U = 96, 112
        e("v_lshrrev_b32 v37, 2, v35"); e("v_lshlrev_b32 v37, 12, v37")
        e("v_and_b32 v38, 3, v35"); e("v_lshl_add_u32 v37, v38, 8, v37")
        e("v_lshl_add_u32 v40, v34, 4, v37")
        e(f"s_lshl_b32 s{S_A}, s{S_RB}, 2"); e(f"s_lshr_b32 s{S_B}, s{S_C}, 3"); e(f"s_add_u32 s{S_A}, s{S_A}, s{S_B}")
        e(f"s_lshl_b32 s{S_CNT}, s{S_A}, 3")
        e(f"s_mul_i32 s{S_A}, s{S_A}, 73728")
        e(f"s_bfe_u32 s{S_B}, s{S_C}, 0x20001"); e(f"s_lshl_b32 s{S_B}, s{S_B}, 10"); e(f"s_add_u32 s{S_A}, s{S_A}, s{S_B}")
        e(f"s_and_b32 s{S_B}, s{S_C}, 1"); e(f"s_lshl_b32 s{S_B}, s{S_B}, 7"); e(f"s_add_u32 s{S_A}, s{S_A}, s{S_B}")
        e(f"s_add_u32 s{S_B}, s{S_A}, {8*8192}")
        e(f"s_lshl_b32 s97, s{S_W}, 13"); e(f"s_add_u32 s{S_A}, s{S_A}, s97")
        e(f"s_add_u32 s97, s{S_A}, {4*8192}")
        e(f"s_cmp_eq_u32 s{S_W}, 0")
        e(f"s_cselect_b32 s{S_B}, s{S_B}, {OOB}")
        e("s_cselect_b32 s100, 1.0, 0")
        e("s_mov_b32 s101, 0xffff0000")
        e("v_lshlrev_b32 v41, 4, v34")
        e(f"v_add_u32 v41, {L_RED}, v41")
        e(f"s_lshl_b32 s98, s{S_W}, 2")
        e("v_add_u32 v42, s98, v41")
        e.wait(vm=["ln"])
        for k in range(12):
            e(f"v_lshlrev_b32 v{U+2*k}, 16, v{X+k}"); e(f"v_and_b32 v{U+2*k+1}, s101, v{X+k}")
        for k in range(4): e(f"v_add_f32 v{44+k}, v{U+k}, v{U+4+k}")
        for k in range(8, 24): e(f"v_add_f32 v{44+(k&3)}, v{44+(k&3)}, v{U+k}")
        def reduce(off):
            e("v_add_f32 v44, v44, v45"); e("v_add_f32 v46, v46, v47"); e("v_add_f32 v44, v44, v46")
            e("v_add_f32_dpp v44, v44, v44 quad_perm:[1,0,3,2] row_mask:0xf bank_mask:0xf")
            e("v_add_f32_dpp v44, v44, v44 quad_perm:[2,3,0,1] row_mask:0xf bank_mask:0xf")
            e("v_add_f32_dpp v44, v44, v44 row_half_mirror row_mask:0xf bank_mask:0xf")
            e(f"ds_write_b32 v42, v44 offset:{off}")
            e.wait(lg="all"); e("s_barrier")
            e(f"ds_read_b128 v[44:47], v41 offset:{off}")
            e.wait(lg="all")
            e("v_add_f32 v44, v44, v45"); e("v_add_f32 v46, v46, v47"); e("v_add_f32 v44, v44, v46")
            e(f"v_mul_f32 v44, {f32(1.0/576)}, v44")
        reduce(0)
        e("v_mov_b32 v48, v44")
        e("v_mul_f32 v49, s100, v48")
        for k in range(24):
            e(f"v_sub_f32 v{50+(k&3)}, v{U+k}, v{48 if k < 16 else 49}")
            if k < 4: e(f"v_mul_f32 v{44+k}, v{50+k}, v{50+k}")
            else: e(f"v_fmac_f32 v{44+(k&3)}, v{50+(k&3)}, v{50+(k&3)}")
        reduce(128)
        e("v_cvt_pk_bf16_f32 v45, v48, v44")
        e("v_lshlrev_b32 v48, 16, v45")
        e("v_and_b32 v44, s101, v45")
        e(f"v_add_f32 v44, {f32(1e-5)}, v44")
        e("v_cvt_pk_bf16_f32 v44, v44, v44"); e("v_and_b32 v44, s101, v44")
        e("v_sqrt_f32 v44, v44")
        e("v_cvt_pk_bf16_f32 v44, v44, v44"); e("v_and_b32 v44, s101, v44")
        e("v_rcp_f32 v44, v44")
        for i in range(3):
            for k in range(4 * i, 4 * i + 4):
                e(f"v_sub_f32 v{U+2*k}, v{U+2*k}, v48"); e(f"v_sub_f32 v{U+2*k+1}, v{U+2*k+1}, v48")
                e(f"v_cvt_pk_bf16_f32 v{X+k}, v{U+2*k}, v{U+2*k+1}")
                e(f"v_lshlrev_b32 v{U+2*k}, 16, v{X+k}"); e(f"v_and_b32 v{U+2*k+1}, s101, v{X+k}")
                e(f"v_mul_f32 v{U+2*k}, v{U+2*k}, v44"); e(f"v_mul_f32 v{U+2*k+1}, v{U+2*k+1}, v44")
                e(f"v_cvt_pk_bf16_f32 v{X+k}, v{U+2*k}, v{U+2*k+1}")
            e(f"buffer_store_dwordx4 v[{X+4*i}:{X+4*i+3}], v40, {sr(SRD_WS)}, s{(S_A, 97, S_B)[i]} offen sc1", "xn")

    def arrive(self):
        e = self.e
        srd(e, SRD_DBG, P_DBG, 256)
        e(f"s_cmp_eq_u32 s{S_W}, 0")
        e(f"s_cselect_b32 s{S_CNT}, s{S_CNT}, {OOB}")
        e("v_mov_b32 v37, 1")
        e.wait(vm=["xn", "clr"])
        e("s_barrier")
        e(f"buffer_atomic_add v37, v{V_F0}, {sr(SRD_DBG)}, s{S_CNT} offen sc1", "arr")

    def addr_rest(self):
        e = self.e
        LANE, G, RR, CC = 33, 34, 35, 36
        lane_fields(e, LANE, G, RR, CC)
        e(f"v_lshlrev_b32 v{V_L8}, 3, v{LANE}")
        e(f"v_add_u32 v{V_L8Q}, 4096, v{V_L8}")
        line_read_addrs(e, V_RD, G, RR, CC, 37, 38)
        for t in range(4): e(f"v_add_u32 v{V_RD+4+t}, 0x10000, v{V_RD+t}")
        e(f"v_lshl_add_u32 v37, v{G}, 2, v{RR}")
        e("v_bfe_u32 v38, v37, 2, 1")
        e("v_lshlrev_b32 v39, 6, v37")
        e(f"v_lshl_add_u32 v39, v{CC}, 3, v39")
        e(f"v_lshl_add_u32 v{V_RC}, v38, 5, v39")
        e("v_xor_b32 v38, 1, v38")
        e("v_lshl_add_u32 v39, v38, 5, v39")
        e(f"v_min_u32 v40, 2, v{CC}")
        e(f"v_lshl_add_u32 v{V_RC+1}, v40, 11, v39")
        e("v_lshlrev_b32 v39, 5, v37")
        e(f"v_lshl_add_u32 v{V_RC+2}, v{CC}, 3, v39")
        for t in range(3): e(f"v_add_u32 v{V_RC+3+t}, 0x10000, v{V_RC+t}")
        e(f"v_add_u32 v{V_RQ}, {L_DQ}, v{V_RC+2}")
        srd(e, SRD_DA, P_WD, N_WF)
        srd(e, SRD_DB, P_WD, N_WF, 128 - 1024)
        e("v_lshrrev_b32 v37, 1, v0")
        e("v_mul_u32_u24 v38, 1152, v37")
        e("v_and_b32 v39, 1, v0")
        e(f"v_lshl_add_u32 v{V_DQ}, v39, 4, v38")
        e(f"s_mul_i32 s{S_A}, s{S_J}, {576*1152}")
        e(f"s_lshl_b32 s{S_B}, s{S_I}, 8")
        e(f"s_add_u32 s{S_OFFD}, s{S_A}, s{S_B}")
        e(f"s_lshl_b32 s{S_B}, s{S_I}, 5")
        e(f"s_add_u32 s{S_OFFDQ}, s{S_A}, s{S_B}")
        e(f"s_add_u32 s{S_OFFDQ}, s{S_OFFDQ}, 1024")
        e(f"s_lshl_b32 s{S_M0Q}, s{S_W}, 10")
        e(f"s_cmp_lt_u32 s{S_W}, 3")
        e("s_cbranch_scc0 L_w3")
        srd(e, SRD_CA, P_WQKV, N_WQKV)
        srd(e, SRD_CB, P_WQKV, N_WQKV, 4 * 3456 - 1024)
        e(f"s_mul_i32 s{S_OFFC}, s{S_W}, 1152")
        e(f"s_mul_i32 s{S_A}, s{S_C}, 36")
        e(f"s_add_u32 s{S_OFFC}, s{S_OFFC}, s{S_A}")
        e(f"s_mov_b32 s{S_STEPC}, {32*3456}")
        e(f"v_lshrrev_b32 v37, 2, v{LANE}")
        kappa(e, 38, 37, 39)
        e("v_mul_u32_u24 v38, 3456, v38")
        e("v_bfe_u32 v39, v37, 2, 1")
        e("v_lshlrev_b32 v39, 1, v39")
        e(f"v_xor_b32 v39, v39, v{CC}")
        e(f"s_cmp_eq_u32 s{S_W}, 1")
        e(f"s_cselect_b32 s{S_A}, 24, 32")
        e(f"s_cmp_eq_u32 s{S_W}, 2")
        e(f"s_cselect_b32 s{S_B}, 3, 2")
        e("v_lshlrev_b32 v40, 4, v39")
        e(f"v_mov_b32 v41, {OOB}")
        e(f"v_mov_b32 v42, s{S_A}")
        e("v_cmp_gt_u32 vcc, 2, v39")
        e("v_cndmask_b32 v40, v41, v40, vcc")
        e(f"v_cmp_eq_u32 vcc, s{S_B}, v39")
        e("v_cndmask_b32 v40, v40, v42, vcc")
        e(f"v_add_u32 v{V_DC}, v38, v40")
        e("s_branch L_wj")
        e.label("L_w3")
        srd(e, SRD_CA, P_WG, N_WF)
        srd(e, SRD_CB, P_WU, N_WF, -1024)
        e(f"s_mul_i32 s{S_OFFC}, s{S_J}, 1152")
        e(f"s_lshl_b32 s{S_A}, s{S_I}, 5")
        e(f"s_add_u32 s{S_OFFC}, s{S_OFFC}, s{S_A}")
        e(f"s_add_u32 s{S_OFFC}, s{S_OFFC}, 1024")
        e(f"s_mov_b32 s{S_STEPC}, {32*9216}")
        e(f"v_lshrrev_b32 v37, 1, v{LANE}")
        kappa(e, 38, 37, 39)
        e("v_mul_u32_u24 v38, 9216, v38")
        e(f"v_and_b32 v39, 1, v{LANE}")
        e(f"v_lshl_add_u32 v{V_DC}, v39, 4, v38")
        e.label("L_wj")
        e(f"s_lshl_b32 s{S_A}, s{S_RB}, 2"); e(f"s_add_u32 s{S_A}, s{S_A}, s{S_W}")
        e(f"s_lshl_b32 s97, s{S_A}, 3")
        e(f"s_mul_i32 s{S_XOFF}, s{S_A}, 73728")
        e(f"s_lshl_b32 s{S_A}, s{S_RB}, 3"); e(f"s_add_u32 s{S_A}, s{S_A}, s{S_J}")
        e(f"s_lshl_b32 s{S_A}, s{S_A}, 2"); e(f"s_add_u32 s{S_A}, s{S_A}, s{S_W}")
        e(f"s_mul_i32 s{S_A}, s{S_A}, 73728"); e(f"s_add_u32 s{S_HB}, s{S_A}, {HF}")
        e(f"s_lshl_b32 s{S_B}, s{S_I}, 14"); e(f"s_add_u32 s{S_H0}, s{S_HB}, s{S_B}")
        e(f"s_add_u32 s{S_H1}, s{S_H0}, 4096")
        e(f"s_lshr_b32 s{S_B}, s{S_I}, 1"); e(f"s_add_u32 s{S_B}, s{S_B}, 16"); e(f"s_lshl_b32 s{S_B}, s{S_B}, 12")
        e(f"s_add_u32 s{S_HQ}, s{S_HB}, s{S_B}")
        e(f"s_and_b32 s{S_B}, s{S_I}, 1"); e(f"s_lshl_b32 s{S_B}, s{S_B}, 9"); e(f"s_add_u32 s{S_HQ}, s{S_HQ}, s{S_B}")
        e(f"s_mul_i32 s{S_KVS}, s{S_C}, {KV_HEAD}"); e(f"s_add_u32 s{S_KVS}, s{S_KVS}, {KV}")
        e(f"s_lshr_b32 s{S_B}, s{S_RB}, 1"); e(f"s_mul_i32 s{S_B}, s{S_B}, {KV_CHUNK}")
        e(f"s_add_u32 s{S_A}, s{S_KVS}, s{S_B}")
        e(f"s_and_b32 s{S_B}, s{S_RB}, 1"); e(f"s_lshl_b32 s{S_B}, s{S_B}, 2"); e(f"s_add_u32 s{S_B}, s{S_B}, s{S_W}")
        e(f"s_lshl_b32 s98, s{S_B}, 11"); e(f"s_add_u32 s{S_KV}, s{S_A}, s98")
        e(f"s_lshl_b32 s98, s{S_B}, 8"); e(f"s_add_u32 s98, s98, s{S_A}"); e(f"s_add_u32 s98, s98, {KV_K1}")
        e(f"s_mul_i32 s99, s{S_B}, {4*VT_GRP}"); e(f"s_add_u32 s99, s99, s{S_A}"); e(f"s_add_u32 s99, s99, {KV_VT}")
        e(f"s_mov_b32 s{S_QS}, {f32(QSCALE)}")
        e(f"v_and_b32 v37, 15, v{LANE}")
        e(f"v_mov_b32 v38, {OOB}")
        e("v_mov_b32 v40, s98")
        e(f"v_cmp_eq_u32 vcc, 1, v{G}")
        e("v_cndmask_b32 v40, v38, v40, vcc")
        e(f"v_lshl_add_u32 v{V_AK1}, v37, 3, v40")
        e("v_mov_b32 v39, 1.0"); e(f"v_mov_b32 v40, s{S_QS}")
        e(f"v_cmp_eq_u32 vcc, 0, v{G}")
        e(f"v_cndmask_b32 v{V_ESC}, v39, v40, vcc")
        e("v_lshrrev_b32 v39, 3, v37"); e(f"v_mul_u32_u24 v39, {VT_HALF}, v39")
        e("v_and_b32 v40, 7, v37"); e("v_lshl_add_u32 v39, v40, 1, v39"); e("v_add_u32 v39, s99, v39")
        e(f"v_add_u32 v40, {16*16}, v39"); e(f"v_add_u32 v41, {18*16}, v39"); e(f"v_add_u32 v42, {17*16}, v39")
        e(f"v_cmp_eq_u32 vcc, 2, v{G}")
        e(f"v_cndmask_b32 v{V_AV0}, v38, v40, vcc")
        e(f"v_cndmask_b32 v{V_AV1}, v38, v42, vcc")
        e(f"v_cmp_eq_u32 s[{S_MASK3}:{S_MASK3+1}], 3, v{G}")
        e(f"v_cndmask_b32 v{V_AV0}, v{V_AV0}, v41, s[{S_MASK3}:{S_MASK3+1}]")
        e(f"v_and_b32 v39, 1, v{G}"); e(f"v_mul_u32_u24 v39, {VT_GRP}, v39")
        e(f"v_lshrrev_b32 v40, 1, v{G}"); e(f"v_mul_u32_u24 v40, {VT_HALF}, v40")
        e("v_add3_u32 v39, v39, v40, s99")
        e(f"v_lshl_add_u32 v{V_AVM}, v37, 4, v39")
        e(f"s_lshl_b32 s{S_A}, s{S_J}, 7"); e(f"s_lshl_b32 s{S_B}, s{S_RB}, 4"); e(f"s_add_u32 s{S_A}, s{S_A}, s{S_B}")
        e(f"s_lshl_b32 s{S_B}, s{S_W}, 2"); e(f"s_add_u32 s{S_A}, s{S_A}, s{S_B}")
        e(f"s_lshl_b32 s{S_A}, s{S_A}, 2"); e(f"s_add_u32 s{S_A}, s{S_A}, s{S_I}")
        e(f"s_mul_i32 s{S_A}, s{S_A}, 4608"); e(f"s_add_u32 s{S_P}, s{S_A}, {PF}")
        for tt in range(1, 4): e(f"s_add_u32 s{S_P+tt}, s{S_P}, {tt*18432}")
        e(f"s_lshl_b32 s{S_A}, s{S_W}, 10"); e(f"s_add_u32 s{S_KVS}, s{S_KVS}, s{S_A}")

    DORD = [0, 1, 4, 5, 8, 9, 12, 13, 2, 3, 6, 7, 10, 11, 14, 15, 16, 17]
    def issue_x(self, s):
        out = [(f"buffer_load_dwordx4 {R(XR(s,tt),4)}, v{V_L16}, {sr(SRD_WS)}, s{S_XOFF} offen offset:{tt*1024} sc1", ("x", s)) for tt in range(4)]
        return out + [(f"s_add_u32 s{S_XOFF}, s{S_XOFF}, 4096", None)]
    def issue_h(self, o):
        ks = self.DORD[o]
        out = [(f"s_add_u32 s{S_HO}, s{S_HB}, {ks*4096}", None)]
        for tt in range(4):
            if ks < 16: out.append((f"buffer_load_dwordx4 {R(HR(o,tt),4)}, v{V_L16}, {sr(SRD_WS)}, s{S_HO} offen offset:{tt*1024} sc1", ("h", o)))
            else:
                for h in range(2): out.append((f"buffer_load_dwordx2 {R(HR(o,tt)+2*h,2)}, v{V_L8}, {sr(SRD_WS)}, s{S_HO} offen offset:{tt*1024+h*512} sc1", ("h", o)))
        return out
    def issue_w(self, n):
        out = []
        if n >= 54 and n - 54 < 5:
            m = n - 54
            out.append((f"s_add_u32 m0, s{S_M0Q}, {L_DQ + m * 4096}", None))
            out.append((f"buffer_load_dwordx4 v{V_DQ}, {sr(SRD_DA)}, s{S_OFFDQ} offen lds", ("w", n)))
            out.append((f"s_add_u32 s{S_OFFDQ}, s{S_OFFDQ}, {128*1152}", None))
        out.append((f"s_add_u32 m0, s{S_M0}, {(n % NS) * 8192}", None))
        if n < 36:
            out.append((f"buffer_load_dwordx4 v{V_DAB}, {sr(SRD_G)}, s{S_OFFAB} offen lds", ("w", n)))
            out.append((f"buffer_load_dwordx4 v{V_DAB}, {sr(SRD_U)}, s{S_OFFAB} offen offset:1024 lds", ("w", n)))
            if n == 17: out.append((f"s_mov_b32 s{S_OFFAB}, s{S_COLB}", None))
            else: out.append((f"s_add_u32 s{S_OFFAB}, s{S_OFFAB}, {32*9216}", None))
        elif n < 54:
            out.append((f"buffer_load_dwordx4 v{V_DC}, {sr(SRD_CA)}, s{S_OFFC} offen lds", ("w", n)))
            out.append((f"buffer_load_dwordx4 v{V_DC}, {sr(SRD_CB)}, s{S_OFFC} offen offset:1024 lds", ("w", n)))
            out.append((f"s_add_u32 s{S_OFFC}, s{S_OFFC}, s{S_STEPC}", None))
        else:
            ks = self.DORD[n - 54]
            out.append((f"s_add_u32 s{S_OFFAB}, s{S_OFFD}, {ks*32*1152}", None))
            out.append((f"buffer_load_dwordx4 v{V_DD}, {sr(SRD_DA)}, s{S_OFFAB} offen lds", ("w", n)))
            out.append((f"buffer_load_dwordx4 v{V_DD}, {sr(SRD_DB)}, s{S_OFFAB} offen offset:1024 lds", ("w", n)))
        return out
    def issue_kv(self, ch):
        out = []
        base = L_X[ch & 1]
        for n in range(10):
            if n < 9: out.append((f"s_add_u32 m0, s{S_M0Q}, {base + n*4096}", None))
            else:
                out.append((f"s_cmp_eq_u32 s{S_W}, 0", None))
                out.append((f"s_cselect_b32 s{S_A}, {base + 9*4096}, s{S_M0J}", None))
                out.append((f"s_mov_b32 m0, s{S_A}", None))
            out.append((f"s_add_u32 s{S_B}, s{S_KVS}, {ch*KV_CHUNK + n*4096}", None))
            if n == 9:
                out.append((f"s_cmp_eq_u32 s{S_W}, 0", None))
                out.append((f"s_cselect_b32 s{S_B}, s{S_B}, {OOB}", None))
            out.append((f"buffer_load_dwordx4 v{V_L16}, {sr(SRD_WS)}, s{S_B} offen sc1 lds", ("kv", ch)))
        return out

    def gemms(self, nw0):
        e = self.e; ws = sr(SRD_WS)
        DW, DX, HL, BK, NBUF, stagger = self.DW, self.DX, self.HL, self.BK, self.NBUF, self.stagger
        def order(groups):
            tiles = sorted(t for g in groups for t in g)
            o = []
            for gr in groups:
                for s in range(stagger): o += [(s, t) for t in gr]
            for s in range(stagger, 18 - stagger): o += [(s, t) for t in tiles]
            for gr in groups:
                for s in range(18 - stagger, 18): o += [(s, t) for t in gr]
            return o
        g8 = [[0, 1], [2, 3], [4, 5], [6, 7]]
        frags = []
        for p, groups in enumerate((g8, g8, [[0, 1], [2, 3], [4, 5]], [[8]] + g8)):
            if p == 3:
                o = order([[6, 7, 8], [0, 1], [2, 3], [4, 5]])[:9 * (18 - stagger)] + order(groups)[9 * (18 - stagger):]
            else: o = order(groups)
            frags += [(p, 18 * p + s, t, s) for s, t in o]
        def rd(p, n, t, half):
            slot = (n % NS) * 8192
            hi = slot >= 65536
            base = slot - 65536 * hi
            if p < 2: return V_RD + 4 * hi + (t >> 1), base + (t & 1) * 1024 + half * 4096
            if p == 3:
                if t == 8: return V_RQ, self.DORD[n - 54] * 1024 + half * 512
                return V_RD + 4 * hi + (t & 3), base + (t >> 2) * 1024 + half * 4096
            if t < 2: return V_RC + 3 * hi + 2, base + 6144 + t * 1024 + half * 512
            if t == 5: return V_RC + 3 * hi + 1, base + half * 1024
            return V_RC + 3 * hi, base + (t - 2) * 2048 + half * 1024
        st = Stream(e, self.cap)
        nf = len(frags)
        first_mf = {}
        for i, (p, n, t, s) in enumerate(frags):
            w = V_W + 4 * (i % NBUF)
            for tt in range(4):
                d = R(ACC(t, tt), 4); c = "0" if s == 0 else d
                b = R(HR(s, tt) if p == 3 else XR(s, tt), 4)
                if p == 2 and t == 4: k = st.mfma(f"v_mfma_f32_16x16x32_bf16 {d}, {b}, {R(w,4)}, {c}")
                else: k = st.mfma(f"v_mfma_f32_16x16x32_bf16 {d}, {R(w,4)}, {b}, {c}")
                if s == 0: first_mf[(p, t, tt)] = k
        def read_frag(i, half):
            p, n, t, s = frags[i]
            a, off = rd(p, n, t, half)
            return f"ds_read_b64_tr_b16 {R(V_W + 4*(i%NBUF) + 2*half,2)}, v{a} offset:{off}", ("f", i)
        first_use = {}; last_use = {}
        for i, (p, n, t, s) in enumerate(frags):
            first_use.setdefault(n, i); last_use[n] = i
        LOOK = NBUF - 1
        def sync(upto):
            tags = [("w", n) for n in range(upto + 1)]
            if upto >= 54: tags += [("w", n) for n in range(54, 59)]
            e.wait(vm=tags); e("s_barrier")
        e(*self.poll_load(SRD_DBG, V_F0, "s97", "p0"))
        self.poll_check(SRD_DBG, V_F0, "s97", "p0", 8, 1)
        self.stamp()
        nx = 0; nw = nw0
        for s in range(DX):
            for t, tag in self.issue_x(s): e(t, tag)
            nx += 1
            if nw < DW:
                for t, tag in self.issue_w(nw): e(t, tag)
                nw += 1
        sync(BK - 1); ready = BK - 1
        self.stamp2()
        for i in range(LOOK):
            for h in range(2): e(*read_frag(i, h))
        at = lambda n, off=0: 4 * first_use[n] + off
        events = {}
        def ev(n, fn): events.setdefault(first_use[n], []).append(fn)
        def side_list(m, lst):
            for t_, tag in lst: st.side(m, BIG, t_, tag)
        def sig(n, tag, pairs):
            def f(m):
                st.side(m, BIG, lambda: e.wait(vm=[tag]))
                for sreg, val in pairs: side_list(m, self.signal(sreg, val, V_T + 31))
            ev(n, f)
        def poll(nload, ncheck, srdn, voff, soff, val, mask, pre=()):
            tag = ("poll", nload)
            def f(m):
                side_list(m, list(pre)); st.side(m, BIG, *self.poll_load(srdn, voff, soff, tag))
            ev(nload, f)
            ev(ncheck, lambda m: st.side(m, BIG, lambda: self.poll_check(srdn, voff, soff, tag, val, mask)))
        sig(23, "stA", [(S_FH, 1)])
        sig(41, "stB", [(S_FH, 2)])
        sig(59, "stC", [(S_FH, 3), (S_FK, 1)])
        poll(28, 31, SRD_DBG, V_T + 30, "0", 8, "-1", pre=[(f"v_lshlrev_b32 v{V_T+30}, 1, v{V_L4}", None)])
        poll(42, 54 - HL - 1, SRD_WS, V_L4, f"s{S_GH}", 1, 15)
        poll(62 - HL - 4, 62 - HL - 1, SRD_WS, V_L4, f"s{S_GH}", 2, 15)
        poll(61, 63, SRD_WS, V_L4, f"s{S_GH}", 3, 15)
        poll(64, 66, SRD_WS, V_L4, f"s{S_GK}", 1, "-1")
        for o in range(18):
            n = 54 + o - HL if o < 16 else 63 + (o - 16)
            ev(n, lambda m, o=o: side_list(m, self.issue_h(o)))
        kv0 = {"done": False}
        seen = set()
        for i, (p, n, t, s) in enumerate(frags):
            m0 = 4 * i
            if n not in seen:
                seen.add(n)
                if p == 0:
                    st.before(m0, lambda s=s: e.wait(vm=[("x", s)]))
                    if nx < 18:
                        side_list(m0 + 1, self.issue_x(nx)); nx += 1
                if p == 3: st.before(m0, lambda s=s: e.wait(vm=[("h", s)]))
            if i and frags[i - 1][0] != p: st.before(m0, self.stamp2)
            st.before(m0, lambda i=i: e.wait(lg=[("f", i)]))
            for fn in events.get(i, []): fn(m0 + 1)
            j = i + LOOK
            if j < nf:
                if frags[j][1] > ready:
                    up = min(71, max(frags[j][1], ready + BK))
                    st.before(m0, lambda up=up: sync(up))
                    ready = up
                    while nw < 72 and all(last_use[q] <= i for q in range(nw - NS + 1)) and nw <= up + DW:
                        side_list(m0 + 1, self.issue_w(nw)); nw += 1
                    if not kv0["done"] and i >= first_use[66] and all(last_use[q] <= i for q in range(64)):
                        side_list(m0 + 1, [(f"s_mov_b32 s{S_M0J}, {L_JUNK}", None)] + self.issue_kv(0)); kv0["done"] = True
                for h in range(2): st.after(m0 + h, *read_frag(j, h))
            if s == 17: self.epilogue(st, p, t, m0 + 5, first_mf)
        assert nw == 72 and nx == 18 and kv0["done"]
        st.emit()

    def epilogue(self, st, p, t, ear, first_mf):
        ws = sr(SRD_WS)
        nxt = lambda tiles: min([first_mf.get((p + 1, t_, tt), BIG) for t_ in tiles for tt in range(4)])
        S_ = lambda dl, text, tag=None: st.side(ear, dl, text, tag)
        if p < 2:
            if t % 2 == 0: return
            pr = t >> 1; dl = nxt([t - 1, t]); T = V_T + 16 * ((pr >> 1) & 1)
            for tt in range(4):
                g_, u_ = ACC(t - 1, tt), ACC(t, tt)
                for r in range(4): S_(dl, f"v_mul_f32 v{g_+r}, v{g_+r}, v{u_+r}")
                for r in range(2): S_(dl, f"v_cvt_pk_bf16_f32 v{T+4*tt+2*(pr&1)+r}, v{g_+2*r}, v{g_+2*r+1}")
                if pr & 1: S_(BIG, f"buffer_store_dwordx4 {R(T+4*tt,4)}, v{V_L16}, {ws}, s{S_H0 if pr == 1 else S_H1} offen offset:{tt*1024} sc1", "stA" if p == 0 else "stB")
            if pr == 3 and p == 0:
                S_(BIG, f"s_add_u32 s{S_H0}, s{S_H0}, 8192"); S_(BIG, f"s_add_u32 s{S_H1}, s{S_H1}, 8192")
        elif p == 2:
            if t == 0: return
            dl = nxt([0, 1] if t == 1 else [t])
            if t == 1:
                for tt in range(4):
                    g_, u_ = ACC(0, tt), ACC(1, tt)
                    for r in range(4): S_(dl, f"v_mul_f32 v{g_+r}, v{g_+r}, v{u_+r}")
                    for r in range(2): S_(dl, f"v_cvt_pk_bf16_f32 v{V_T+2*tt+r}, v{g_+2*r}, v{g_+2*r+1}")
                    S_(BIG, f"buffer_store_dwordx2 {R(V_T+2*tt,2)}, v{V_L8}, {ws}, s{S_HQ} offen offset:{tt*1024} sc1", "stC")
            elif t in (2, 3, 4):
                T = V_Q0 if t == 2 else V_T + 8 * (t - 2)
                for tt in range(4):
                    a_ = ACC(t, tt)
                    if t == 2:
                        for r in range(4): S_(dl, f"v_mul_f32 v{a_+r}, s{S_QS}, v{a_+r}")
                    for r in range(2): S_(dl, f"v_cvt_pk_bf16_f32 v{T+2*tt+r}, v{a_+2*r}, v{a_+2*r+1}")
                for pr in range(2):
                    for r in range(2): S_(BIG, f"v_permlane16_swap_b32 v{T+4*pr+r}, v{T+4*pr+2+r}")
                for pr in range(2):
                    if t == 3: S_(BIG, f"buffer_store_dwordx4 {R(T+4*pr,4)}, v{V_L16}, {ws}, s{S_KV} offen offset:{pr*1024} sc1", "stC")
                    if t == 4: S_(BIG, f"buffer_store_dwordx4 {R(T+4*pr,4)}, v{V_AVM}, {ws}, 0 offen offset:{pr*2*VT_GRP} sc1", "stC")
            else:
                T = V_T + 24; pos = [0, 2, 1, 3]; ONE = V_T + 28
                S_(dl, f"v_mov_b32 v{ONE}, 0x3f803f80")
                for tt in range(4):
                    a_ = ACC(5, tt)
                    for r in range(2): S_(dl, f"v_mul_f32 v{a_+r}, v{V_ESC}, v{a_+r}")
                    S_(dl, f"v_cvt_pk_bf16_f32 v{T+pos[tt]}, v{a_}, v{a_+1}")
                    S_(dl, f"v_cndmask_b32 v{T+pos[tt]}, v{T+pos[tt]}, v{ONE}, s[{S_MASK3}:{S_MASK3+1}]")
                for pr in range(2): S_(BIG, f"buffer_store_dwordx2 {R(T+2*pr,2)}, v{V_AK1}, {ws}, 0 offen offset:{pr*128} sc1", "stC")
                for tt in range(4):
                    S_(BIG, f"buffer_store_short v{T+pos[tt]}, v{V_AV0}, {ws}, 0 offen offset:{tt*VT_GRP} sc1", "stC")
                    S_(BIG, f"buffer_store_short_d16_hi v{T+pos[tt]}, v{V_AV1}, {ws}, 0 offen offset:{tt*VT_GRP} sc1", "stC")
                S_(BIG, f"v_cmp_gt_u32 vcc, 512, v{V_L16}")
                for q in range(2):
                    Q = V_Q1 + 4 * q
                    S_(BIG, f"v_mov_b32 v{Q}, v{T+pos[2*q]}"); S_(BIG, f"v_mov_b32 v{Q+1}, v{T+pos[2*q+1]}")
                    S_(BIG, f"v_permlane16_swap_b32 v{Q}, v{Q+1}")
                    S_(BIG, f"v_cndmask_b32 v{Q}, 0, v{Q}, vcc")
                    S_(BIG, f"v_mov_b32 v{Q+3}, v{Q}"); S_(BIG, f"v_mov_b32 v{Q+1}, 0"); S_(BIG, f"v_mov_b32 v{Q+2}, 0")
        else:
            if t == 8:
                for tt in range(4):
                    a_ = ACC(t, tt)
                    for r in range(2): S_(BIG, f"v_cvt_pk_bf16_f32 v{V_T+16+2*tt+r}, v{a_+2*r}, v{a_+2*r+1}")
                    S_(BIG, f"buffer_store_dwordx2 {R(V_T+16+2*tt,2)}, v{V_L8Q}, {ws}, s{S_P+tt} offen sc1", "stD")
            elif t & 1:
                pr = t >> 1; T = V_T + 16 * (pr & 1)
                for tt in range(4):
                    for h in range(2):
                        a_ = ACC(t - 1 + h, tt)
                        for r in range(2): S_(BIG, f"v_cvt_pk_bf16_f32 v{T+4*tt+2*h+r}, v{a_+2*r}, v{a_+2*r+1}")
                    S_(BIG, f"buffer_store_dwordx4 {R(T+4*tt,4)}, v{V_L16}, {ws}, s{S_P+tt} offen offset:{pr*1024} sc1", "stD")

    def final_setup(self):
        o = []
        a = lambda t, tag=None: o.append((t, tag))
        T0, T1, T2, T3 = V_T, V_T + 1, V_T + 2, V_T + 3
        class Rec:
            def __call__(s, t, tag=None): a(t, tag)
        srd(Rec(), SRD_WO, P_WO, N_WO); srd(Rec(), SRD_OUT, P_OUT, N_X)
        def rows(rho, dm, de):
            a(f"v_bfe_u32 v{T2}, v{rho}, 3, 1"); a(f"v_mul_u32_u24 v{dm}, 18, v{T2}")
            a(f"v_lshrrev_b32 v{T2}, 4, v{rho}"); a(f"v_lshl_add_u32 v{dm}, v{T2}, 3, v{dm}")
            a(f"v_and_b32 v{T3}, 7, v{rho}"); a(f"v_add_u32 v{dm}, v{dm}, v{T3}")
            a(f"v_bfe_u32 v{T3}, v{rho}, 2, 2"); a(f"v_lshlrev_b32 v{T3}, 2, v{T3}")
            a(f"v_lshl_add_u32 v{T3}, v{T2}, 1, v{T3}"); a(f"v_bfe_u32 v{T2}, v{rho}, 1, 1"); a(f"v_add_u32 v{T3}, v{T3}, v{T2}")
            a(f"v_mul_u32_u24 v{de}, 18, v{T3}"); a(f"v_and_b32 v{T2}, 1, v{rho}"); a(f"v_add3_u32 v{de}, v{de}, v{T2}, 16")
        a(f"v_lshrrev_b32 v{T0}, 3, v0")
        rows(T0, F_DM, F_DE)
        a(f"v_and_b32 v{T2}, 6, v{T0}"); a(f"v_and_b32 v{T3}, 7, v0"); a(f"v_xor_b32 v{T1}, v{T2}, v{T3}"); a(f"v_lshlrev_b32 v{T1}, 4, v{T1}")
        for r in (F_DM, F_DE):
            a(f"v_mul_u32_u24 v{r}, 1152, v{r}"); a(f"v_add_u32 v{r}, v{r}, v{T1}")
        a(f"s_lshl_b32 s{S_A}, s{S_W}, 3")
        a(f"v_and_b32 v{T0}, 7, v0"); a(f"v_add_u32 v{T0}, s{S_A}, v{T0}")
        rows(T0, F_DQM, F_DQE)
        a(f"v_bfe_u32 v{T1}, v0, 3, 3")
        a(f"v_mul_u32_u24 v{T2}, 36, v{T1}"); a(f"v_add_u32 v{F_DQM}, v{F_DQM}, v{T2}"); a(f"v_mul_u32_u24 v{F_DQM}, 1152, v{F_DQM}")
        a(f"v_mul_u32_u24 v{T2}, 288, v{T1}"); a(f"v_add_u32 v{F_DQE}, v{F_DQE}, v{T2}"); a(f"v_mul_u32_u24 v{F_DQE}, 1152, v{F_DQE}")
        a(f"v_bfe_u32 v{T0}, v0, 2, 4")
        a(f"v_lshrrev_b32 v{T1}, 3, v{T0}"); a(f"v_mul_u32_u24 v{T1}, 3072, v{T1}")
        a(f"v_and_b32 v{T0}, 7, v{T0}"); a(f"v_lshl_add_u32 v{T1}, v{T0}, 4, v{T1}")
        a(f"v_and_b32 v{T0}, 1, v0"); a(f"v_lshl_add_u32 v{T1}, v{T0}, 3, v{T1}")
        a(f"v_add_u32 v{F_RQ}, {L_WOQ}, v{T1}")
        a(f"v_bfe_u32 v{T0}, v0, 4, 2"); a(f"v_and_b32 v{T1}, 15, v0")
        a(f"v_lshrrev_b32 v{T2}, 1, v{T0}"); a(f"v_lshlrev_b32 v{T2}, 16, v{T2}")
        a(f"v_and_b32 v{T3}, 1, v{T0}"); a(f"v_lshl_add_u32 v{T2}, v{T3}, 9, v{T2}"); a(f"v_lshl_add_u32 v{F_AO}, v{T1}, 4, v{T2}")
        a(f"v_lshlrev_b32 v{T2}, 15, v{T0}"); a(f"v_lshl_add_u32 v{F_AOE}, v{T1}, 2, v{T2}")
        a(f"s_lshl_b32 s{S_HB}, s{S_RB}, 2"); a(f"s_add_u32 s{S_HB}, s{S_HB}, s{S_I}")
        a(f"s_lshl_b32 s{S_HB}, s{S_HB}, 2"); a(f"s_add_u32 s{S_HB}, s{S_HB}, s{S_W}")
        a(f"s_lshl_b32 s{S_A}, s{S_HB}, 4")
        a(f"v_add_u32 v{T2}, s{S_A}, v{T1}"); a(f"v_mul_u32_u24 v{T2}, 1152, v{T2}"); a(f"v_lshl_add_u32 v{T2}, v{T0}, 3, v{T2}")
        a(f"s_lshl_b32 s{S_A}, s{S_J}, 7"); a(f"v_add_u32 v{F_AX}, s{S_A}, v{T2}")
        a(f"s_lshl_b32 s{S_A}, s{S_J}, 4"); a(f"s_add_u32 s{S_A}, s{S_A}, 1024"); a(f"v_add_u32 v{T2}, s{S_A}, v{T2}")
        a(f"v_mov_b32 v{T3}, {OOB}"); a(f"v_cmp_gt_u32 vcc, 2, v{T0}")
        a(f"v_cndmask_b32 v{F_AXQ}, v{T3}, v{T2}, vcc")
        a(f"s_and_b32 s{S_A}, s{S_J}, 1"); a(f"s_lshl_b32 s{S_B}, s{S_A}, 11"); a(f"v_add_u32 v{F_AP}, s{S_B}, v{V_L16}")
        a(f"s_lshl_b32 s{S_B}, s{S_A}, 8"); a(f"v_add_u32 v{T2}, s{S_B}, v{V_L8Q}"); a(f"v_cndmask_b32 v{F_APQ}, v{T3}, v{T2}, vcc")
        a(f"s_lshr_b32 s{S_A}, s{S_J}, 1"); a(f"s_lshl_b32 s{S_B}, s{S_HB}, 2"); a(f"s_add_u32 s{S_A}, s{S_A}, s{S_B}")
        a(f"s_mul_i32 s{S_P}, s{S_A}, 4608"); a(f"s_add_u32 s{S_P}, s{S_P}, {PF}")
        a(f"s_lshr_b32 s{S_A}, s{S_HB}, 1"); a(f"s_lshl_b32 s{S_A}, s{S_A}, 10")
        a(f"s_and_b32 s{S_B}, s{S_HB}, 1"); a(f"s_lshl_b32 s{S_B}, s{S_B}, 8"); a(f"s_add_u32 s{S_A}, s{S_A}, s{S_B}")
        a(f"s_add_u32 s{S_P+1}, s{S_A}, {OF0}")
        a(f"s_lshl_b32 s{S_A}, s{S_HB}, 6"); a(f"s_add_u32 s{S_P+2}, s{S_A}, {OF1}")
        a(f"s_lshl_b32 s{S_OFFD}, s{S_J}, 7")
        a(f"s_lshl_b32 s{S_OFFDQ}, s{S_J}, 4"); a(f"s_add_u32 s{S_OFFDQ}, s{S_OFFDQ}, 1024")
        a(f"s_mul_i32 s{S_HO}, s{S_W}, 3072"); a(f"s_add_u32 s{S_HO}, s{S_HO}, {L_WOQ}")
        return o
    def issue_wo(self):
        o = []; wo = sr(SRD_WO)
        for u in range(9):
            d = F_DM if u < 8 else F_DE
            o.append((f"s_add_u32 m0, s{S_M0}, {u*8192}", None))
            o.append((f"s_add_u32 s{S_A}, s{S_OFFD}, {u*72*1152 if u < 8 else 0}", None))
            o.append((f"buffer_load_dwordx4 v{d}, {wo}, s{S_A} offen lds", "wo"))
            o.append((f"s_add_u32 s{S_A}, s{S_A}, {(36 if u < 8 else 288)*1152 - 1024}", None))
            o.append((f"buffer_load_dwordx4 v{d}, {wo}, s{S_A} offen offset:1024 lds", "wo"))
        for m in range(3):
            o.append((f"s_add_u32 m0, s{S_HO}, {m*1024}", None))
            o.append((f"s_add_u32 s{S_A}, s{S_OFFDQ}, {288*1152 if m == 1 else 0}", None))
            o.append((f"buffer_load_dwordx4 v{F_DQM if m < 2 else F_DQE}, {wo}, s{S_A} offen lds", "wo"))
        return o
    def issue_part(self):
        o = []; ws = sr(SRD_WS)
        for j in range(8):
            for pr in range(2): o.append((f"buffer_load_dwordx4 {R(F_P+10*j+4*pr,4)}, v{F_AP}, {ws}, s{S_P} offen offset:{pr*1024} sc1", ("part", j)))
            o.append((f"buffer_load_dwordx2 {R(F_P+10*j+8,2)}, v{F_APQ}, {ws}, s{S_P} offen sc1", ("part", j)))
            o.append((f"s_add_u32 s{S_P}, s{S_P}, {128*4*4608}", None))
        for t in range(4): o.append((f"buffer_load_dwordx2 {R(F_X+2*t,2)}, v{F_AX}, {sr(SRD_X)}, 0 offen offset:{t*32}", "xres"))
        o.append((f"buffer_load_dwordx2 {R(F_X+8,2)}, v{F_AXQ}, {sr(SRD_X)}, 0 offen", "xres"))
        return o

    def attention(self):
        e = self.e; ws = sr(SRD_WS)
        self.stamp2()
        e("v_and_b32 v32, 63, v0")
        e("v_and_b32 v33, 31, v0")
        e(f"v_add_u32 v{A_AK0}, {L_X[0]}, v{V_L16}")
        e(f"v_lshlrev_b32 v{A_AK1}, 3, v33"); e(f"v_add_u32 v{A_AK1}, {L_X[0]}, v{A_AK1}")
        e("v_lshrrev_b32 v34, 5, v32"); e(f"v_mul_u32_u24 v34, {VT_HALF}, v34")
        e(f"v_min_u32 v{A_GV}, 18, v33"); e(f"v_lshl_add_u32 v{A_GV}, v{A_GV}, 4, v34")
        e(f"v_mov_b32 v34, {OOB}")
        e("v_cmp_gt_u32 vcc, 19, v33"); e(f"v_cmp_eq_u32 s[98:99], 22, v33"); e("s_or_b64 vcc, vcc, s[98:99]")
        e(f"v_cndmask_b32 v{A_GV}, v34, v{A_GV}, vcc")
        e(f"v_add_u32 v{A_AV}, {L_X[0]}, v{A_GV}")
        for a in (A_AK0, A_AK1, A_AV): e(f"v_add_u32 v{a+1}, {KV_CHUNK}, v{a}")
        e("v_cmp_gt_u32 vcc, 32, v32")
        e(f"v_cndmask_b32 v{A_AO1}, v34, v{V_L4}, vcc")
        e(f"v_mov_b32 v{A_IDX}, 0xdddd")
        for i in range(32): e(f"v_mov_b32 v{A_O+i}, 0")
        Sb = lambda q, T: A_S + 32 * q + 16 * (T & 1)
        sl = lambda T: (T // 16) & 1
        rdK0 = lambda T: (f"ds_read_b128 {R(A_K0,4)}, v{A_AK0+sl(T)} offset:{(T%16)*1024}", ("k0", T))
        rdK1 = lambda T: (f"ds_read_b64 {R(A_K1,2)}, v{A_AK1+sl(T)} offset:{KV_K1+((T%16)//2)*256}", ("k1", T // 2))
        rdV = lambda T, h: (f"ds_read_b128 {R(A_VB if h else A_VA,4)}, v{A_AV+sl(T)} offset:{KV_VT+((T%16)*2+h)*VT_GRP}", ("v", T, h))
        qk0 = lambda q, T, c="0": f"v_mfma_f32_32x32x16_bf16 {R(Sb(q,T),16)}, {R(A_K0,4)}, {R(V_Q0+4*q,4)}, {c}"
        qk1 = lambda q, T: f"v_mfma_f32_32x32x8bf16_1k {R(Sb(q,T),16)}, {R(A_K1,2)}, {R(V_Q1+4*q+2*(T&1),2)}, {R(Sb(q,T),16)}"
        pv = lambda q, T, h: f"v_smfmac_f32_32x32x32_bf16 {R(A_O+16*q,16)}, {R(A_VB if h else A_VA,4)}, {R(Sb(q,T)+8*h,8)}, v{A_IDX}"
        self.qk0, self.qk1, self.pv, self.Sb = qk0, qk1, pv, Sb
        e.wait(vm=[("kv", 0)]); e("s_barrier")
        e(*rdK0(0)); e(*rdK1(0)); e(*rdV(0, 0))
        e.wait(lg=[("k1", 0)])
        e(qk0(0, 0)); e(qk0(1, 0)); e(*rdK0(1)); e(qk1(0, 0)); e(qk1(1, 0))
        bg = []
        def later(T, lst):
            for x in lst: bg.append((T,) + (x if isinstance(x, tuple) else (x, None)))
        later(0, self.issue_kv(1))
        later(3, [lambda: e.wait(vm=["stD"])] + self.signal(S_FP, 1, V_T + 31))
        later(4, self.final_setup())
        later(8, self.issue_wo())
        later(17, self.issue_kv(2))
        later(33, self.issue_kv(3))
        later(38, [self.poll_load(SRD_WS, V_L4, f"s{S_GP}", "pp")])
        later(41, [lambda: self.poll_check(SRD_WS, V_L4, f"s{S_GP}", "pp", 1, 255)])
        later(42, self.issue_part())
        bi = [0]
        def background(T, budget):
            while bi[0] < len(bg) and bg[bi[0]][0] <= T and budget > 0:
                _, text, tag = bg[bi[0]]; bi[0] += 1
                if callable(text): text()
                else: e(text, tag)
                budget -= 1
        NT = 64
        for T in range(NT):
            nx = T + 1 < NT
            for slot in range(32):
                q, i = slot >> 4, slot & 15
                if slot == 2:
                    if T > 0: e(pv(1, T - 1, 1))
                    e(*rdV(T, 1))
                    if nx: e.wait(lg=[("k0", T + 1)])
                if slot == 6:
                    if nx: e(qk0(0, T + 1))
                    e.wait(lg=[("v", T, 0)])
                    background(T, 2)
                if slot == 10:
                    e(pv(0, T, 0))
                    if nx: e.wait(lg=[("k1", (T + 1) // 2)])
                    background(T, 3)
                if slot == 14:
                    if nx: e(qk1(0, T + 1))
                    e.wait(lg=[("v", T, 1)])
                    if T % 16 == 0 and T in (16, 32): e("s_barrier")
                if slot == 18:
                    e(pv(0, T, 1))
                    if T % 16 == 14 and T + 2 < NT:
                        e.wait(vm=[("kv", (T + 2) // 16)]); e("s_barrier")
                    else: background(T, 3)
                if slot == 22 and nx:
                    e(qk0(1, T + 1))
                    if T + 2 < NT: e(*rdK0(T + 2))
                    background(T, 2)
                if slot == 26:
                    e(pv(1, T, 0))
                    if nx: e(*rdV(T + 1, 0))
                    background(T, 2)
                if slot == 30 and nx:
                    e(qk1(1, T + 1))
                    if T % 2 == 0 and T + 2 < NT: e(*rdK1(T + 2))
                e(f"v_exp_f32 v{Sb(q,T)+i}, v{Sb(q,T)+i}")
        assert bi[0] == len(bg)
        e(pv(1, NT - 1, 1))
        self.stamp2()
        e(f"s_mov_b32 s{S_A}, {f32(2.0**-64)}"); e(f"s_mov_b32 s{S_B}, {f32(2.0**64)}"); e(f"s_mov_b32 s97, {f32(2.0**120)}")
        e("s_mov_b64 s[98:99], exec")
        for q in range(2):
            O = A_O + 16 * q
            e(f"v_max3_f32 v{V_T}, |v{O}|, |v{O+1}|, |v{O+2}|")
            for r in (3, 5, 7): e(f"v_max3_f32 v{V_T}, v{V_T}, |v{O+r}|, |v{O+r+1}|")
            e(f"v_max_f32 v{V_T}, v{V_T}, |v{O+9}|")
            for cmp in (f"v_cmp_le_f32 vcc, s{S_A}, v{O+10}", f"v_cmp_ge_f32 vcc, s{S_B}, v{O+10}", f"v_cmp_ge_f32 vcc, s97, v{V_T}"):
                e(cmp); e("s_and_b64 s[98:99], s[98:99], vcc")
        e("s_cmp_eq_u64 s[98:99], exec")
        e("s_cbranch_scc0 L_slow")
        e.label("L_fin")
        e(f"s_lshl_b32 s{S_A}, s{S_C}, 3"); e(f"s_add_u32 s{S_A}, s{S_A}, s{S_RB}")
        e(f"s_lshl_b32 s{S_A}, s{S_A}, 2"); e(f"s_add_u32 s{S_A}, s{S_A}, s{S_W}")
        e(f"s_lshl_b32 s{S_B}, s{S_A}, 8"); e(f"s_add_u32 s{S_B}, s{S_B}, {OF1}")
        e(f"s_lshl_b32 s{S_A}, s{S_A}, 11"); e(f"s_add_u32 s{S_A}, s{S_A}, {OF0}")
        for q in range(2):
            O = A_O + 16 * q
            e(f"v_rcp_f32 v{O+10}, v{O+10}")
            for r in range(10): e(f"v_mul_f32 v{O+r}, v{O+r}, v{O+10}")
            for r in range(5): e(f"v_cvt_pk_bf16_f32 v{V_T+6*q+r}, v{O+2*r}, v{O+2*r+1}")
            e(f"buffer_store_dwordx4 {R(V_T+6*q,4)}, v{V_L16}, {ws}, s{S_A} offen offset:{q*1024} sc1", "sto")
            e(f"buffer_store_dword v{V_T+6*q+4}, v{A_AO1}, {ws}, s{S_B} offen offset:{q*128} sc1", "sto")
        self.tail.append(self.slow_path)

    def slow_path(self):
        e = self.e; ws = sr(SRD_WS); qk0, qk1, pv, Sb = self.qk0, self.qk1, self.pv, self.Sb
        e.label("L_slow")
        A1 = V_T
        e(f"v_lshlrev_b32 v{A1}, 1, v{V_L4}")
        def loop(tag, body):
            e(f"s_mul_i32 s{S_A}, s{S_C}, {KV_HEAD}"); e(f"s_add_u32 s{S_A}, s{S_A}, {KV}")
            e(f"s_add_u32 s{S_B}, s{S_A}, {KV_K1}"); e(f"s_add_u32 s97, s{S_A}, {KV_VT}")
            e(f"s_mov_b32 s{S_CNT}, 0")
            e.label(f"L_slow_{tag}")
            e(f"buffer_load_dwordx2 {R(A_K1,2)}, v{A1}, {ws}, s{S_B} offen sc1")
            for t in range(2):
                e(f"buffer_load_dwordx4 {R(A_K0,4)}, v{V_L16}, {ws}, s{S_A} offen offset:{t*1024} sc1")
                e(f"buffer_load_dwordx4 {R(A_VA,4)}, v{A_GV}, {ws}, s97 offen offset:{2*t*VT_GRP} sc1")
                e(f"buffer_load_dwordx4 {R(A_VB,4)}, v{A_GV}, {ws}, s97 offen offset:{(2*t+1)*VT_GRP} sc1")
                e.wait(vm="all")
                body(t)
                e.fence()
            e(f"s_add_u32 s{S_A}, s{S_A}, 2048"); e(f"s_add_u32 s{S_B}, s{S_B}, 256"); e(f"s_add_u32 s97, s97, {4*VT_GRP}")
            e(f"s_add_u32 s{S_CNT}, s{S_CNT}, 1")
            e(f"s_and_b32 s98, s{S_CNT}, 7")
            e(f"s_cbranch_scc1 L_slow_{tag}")
            e(f"s_add_u32 s{S_A}, s{S_A}, {KV_CHUNK-16384}"); e(f"s_add_u32 s{S_B}, s{S_B}, {KV_CHUNK-2048}"); e(f"s_add_u32 s97, s97, {KV_CHUNK-32*VT_GRP}")
            e(f"s_cmp_lt_u32 s{S_CNT}, 32")
            e(f"s_cbranch_scc1 L_slow_{tag}")
            e.fence()
        M = lambda q: (48, 64)[q]
        for q in range(2): e(f"v_mov_b32 v{M(q)}, 0xff800000")
        def body_max(t):
            for q in range(2): e(qk0(q, t))
            for q in range(2): e(qk1(q, t))
            for q in range(2):
                for r in range(0, 16, 2): e(f"v_max3_f32 v{M(q)}, v{M(q)}, v{Sb(q,t)+r}, v{Sb(q,t)+r+1}")
        loop("max", body_max)
        for q in range(2):
            m = M(q)
            e(f"v_mov_b32 v{m+1}, v{m}"); e(f"v_permlane32_swap_b32 v{m}, v{m+1}")
            e(f"v_max_f32 v{m}, v{m}, v{m+1}"); e(f"v_sub_f32 v{m}, 0, v{m}")
            for r in range(1, 16): e(f"v_mov_b32 v{m+r}, v{m}")
        for i in range(32): e(f"v_mov_b32 v{A_O+i}, 0")
        def body_sum(t):
            for q in range(2): e(qk0(q, t, R(M(q), 16)))
            for q in range(2): e(qk1(q, t))
            for q in range(2):
                for r in range(16): e(f"v_exp_f32 v{Sb(q,t)+r}, v{Sb(q,t)+r}")
            for q in range(2):
                for h in range(2): e(pv(q, t, h))
        loop("sum", body_sum)
        e("s_branch L_fin")

    def final(self):
        e = self.e; ws = sr(SRD_WS)
        FA, FB, FT = 44, 96, 32
        nreg = list(range(336, 512, 4)) + list(range(168, 216, 4)) + list(range(228, 256, 4)) + list(range(64, 96, 4))
        frags = [(s, t) for s in range(18) for t in range(5)]
        npre = len(nreg)
        def wreg(i): return nreg[i % npre]
        def read_frag(i):
            s, t = frags[i]
            for h in range(2):
                if t == 4: a, off = F_RQ, (s >> 3) * 1024 + (s & 7) * 128 + h * 6144
                else:
                    slot = (s >> 1) * 8192; hi = slot >= 65536
                    a, off = V_RD + 4 * hi + t, slot - 65536 * hi + (s & 1) * 1024 + h * 4096
                e(f"ds_read_b64_tr_b16 {R(wreg(i)+2*h,2)}, v{a} offset:{off}", ("g", i))
        e("s_mov_b32 s101, 0xffff0000")
        e.wait(vm=["xres"])
        for k in range(10):
            e(f"v_lshlrev_b32 v{FA+2*k}, 16, v{F_X+k}"); e(f"v_and_b32 v{FA+2*k+1}, s101, v{F_X+k}")
        ri = 0
        signalled = False
        for j in range(8):
            for k in range(10):
                e(f"v_accvgpr_read_b32 v{166}, {R(F_P+10*j+k)}")
                e(f"v_lshlrev_b32 v167, 16, v166"); e(f"v_and_b32 v166, s101, v166")
                e(f"v_add_f32 v{FA+2*k}, v{FA+2*k}, v167"); e(f"v_add_f32 v{FA+2*k+1}, v{FA+2*k+1}, v166")
                if ri < npre and k % 10 < 9:
                    if len(e.lg) > 10: e.wait(lg=[e.lg[-9]])
                    read_frag(ri); ri += 1
            if j == 2:
                e.wait(vm=["sto"])
                for t_, tag in self.signal(S_FO, 1, FT + 11): e(t_, tag)
                self.stamp()
        while ri < npre:
            if len(e.lg) > 10: e.wait(lg=[e.lg[-9]])
            read_frag(ri); ri += 1
        e(*self.poll_load(SRD_WS, V_L4, f"s{S_GO}", "po"))
        self.poll_check(SRD_WS, V_L4, f"s{S_GO}", "po", 1, "-1")
        self.stamp()
        for s in range(16):
            e(f"buffer_load_dwordx4 {R(FB+4*s,4)}, v{F_AO}, {ws}, s{S_P+1} offen sc1", ("o", s))
            e(f"s_add_u32 s{S_P+1}, s{S_P+1}, 131072")
        for s in (16, 17):
            for jj in range(4):
                e(f"buffer_load_dword v{FB+4*s+jj}, v{F_AOE}, {ws}, s{S_P+2} offen sc1", ("o", s))
                e(f"s_add_u32 s{S_P+2}, s{S_P+2}, {8192 if jj < 3 else 131072 - 3*8192}")
        for i, (s, t) in enumerate(frags):
            if t == 0: e.wait(vm=[("o", s)])
            e.wait(lg=[("g", i)])
            d = R(FA + 4 * t, 4)
            e(f"v_mfma_f32_16x16x32_bf16 {d}, {R(wreg(i),4)}, {R(FB+4*s,4)}, {d}")
            if ri < len(frags):
                if len(e.lg) > 10: e.wait(lg=[e.lg[-9]])
                read_frag(ri); ri += 1
        for t in range(5):
            for r in range(2): e(f"v_cvt_pk_bf16_f32 v{FT+2*t+r}, v{FA+4*t+2*r}, v{FA+4*t+2*r+1}")
            if t < 4: e(f"buffer_store_dwordx2 {R(FT+2*t,2)}, v{F_AX}, {sr(SRD_OUT)}, 0 offen offset:{t*32}")
            else: e(f"buffer_store_dwordx2 {R(FT+2*t,2)}, v{F_AXQ}, {sr(SRD_OUT)}, 0 offen")

    def finish(self):
        e = self.e
        if self.diag:
            self.stamp()
            e.wait(vm="all")
            self.stamp()
            e(f"s_mov_b32 s10, {DIAG + 0x400000}")
            e("s_lshl_b32 s100, s2, 2"); e(f"s_add_u32 s100, s100, s{S_W}"); e("s_lshl_b32 s100, s100, 7")
            e(f"s_add_u32 s100, s100, {DIAG}")
            e("s_mov_b64 exec, 0xffffffff")
            e(f"buffer_store_dword v{V_DG}, v{V_L4}, {sr(SRD_WS)}, s100 offen")
        e.label("L_end")
        e("s_endpgm")
        i = 0
        while i < len(self.tail):
            e.vm = []; e.lg = []
            self.tail[i](); i += 1
        e.raw("L_codeend:")

    def build(self):
        e = self.e
        self.setup()
        self.layernorm_load()
        self.w_addr_ab()
        nw0 = 2
        for n in range(nw0):
            for t, tag in self.issue_w(n): e(t, tag)
        self.code_prefetch()
        self.flags_setup()
        self.layernorm()
        self.stamp()
        self.arrive()
        for n in range(nw0, 6):
            for t, tag in self.issue_w(n): e(t, tag)
        self.addr_rest()
        self.gemms(6)
        self.attention()
        self.final()
        self.finish()
        print(f"{e.count} instrs, {e.nops} nop states, {e.forced} forced vm waits, {self.nst} stamps")
        head = open("parallel_sum__mha_block__glu_gated_bilinear__prompt.s.ref").read().split("; Override launch")[0]
        return (head + f"; @launch grid=(256,1,1) block=(256,1,1) lds={LDS_BYTES}\n"
                + '.amdgcn_target "amdgcn-amd-amdhsa--gfx950"\n.text\n' + e.text()
                + '.section .rodata,"a"\n.p2align 6\n' + kernel_desc(NAME, 512, 256))

if __name__ == "__main__":
    open("mega.s", "w").write(Gen().build())
    open("mega_diag.s", "w").write(Gen(diag=True).build())
```

```python
import re

TRANS = ("v_exp_f32", "v_log_f32", "v_rcp_f32", "v_rsq_f32", "v_sqrt_f32", "v_sin_f32", "v_cos_f32")
PASSES = {"v_mfma_f32_16x16x32_bf16": 4, "v_mfma_f32_32x32x16_bf16": 8, "v_mfma_f32_32x32x8bf16_1k": 8,
          "v_smfmac_f32_32x32x32_bf16": 8, "v_smfmac_f32_16x16x64_bf16": 4}
D_TO_VALU = {4: 8, 8: 12}
D_TO_C_OVERLAP = {4: 6, 8: 10}
C_WAR = {4: 3, 8: 7}

def R(i, n=1):
    p, j = ("a", i - 256) if i >= 256 else ("v", i)
    assert (i >= 256) == (i + n - 1 >= 256), (i, n)
    return f"{p}{j}" if n == 1 else f"{p}[{j}:{j+n-1}]"

def S(i, n=1):
    return f"s{i}" if n == 1 else f"s[{i}:{i+n-1}]"

_tok = re.compile(r"^-?\|?(?:abs\()?([vas])(?:(\d+)|\[(\d+):(\d+)\])\)?\|?$")
def regs_of(op):
    op = op.strip()
    if op in ("vcc", "vcc_lo", "vcc_hi"): return {("s", "vcc")}
    if op == "exec": return {("s", "exec")}
    if op == "m0": return {("s", "m0")}
    m = _tok.match(op)
    if not m: return set()
    lo = int(m.group(2) if m.group(2) is not None else m.group(3))
    hi = int(m.group(2) if m.group(2) is not None else m.group(4))
    k = m.group(1)
    if k == "a": return {("v", 256 + i) for i in range(lo, hi + 1)}
    return {(k, i) for i in range(lo, hi + 1)}

class Ins:
    __slots__ = ("text", "op", "kind", "w", "r", "a", "b", "c", "passes", "states", "sdata")
    def __init__(self, text):
        self.text = text
        body = text.split(";")[0].strip()
        parts = body.split(None, 1)
        self.op = op = parts[0]
        ops = []
        if len(parts) > 1:
            ops = [o.strip() for o in re.split(r",(?![^\[]*\])", parts[1])]
            if ops:
                last = ops[-1].split()
                ops[-1] = last[0]
                mods = last[1:]
            else: mods = []
        else: mods = []
        self.w = set(); self.r = set(); self.a = self.b = self.c = set(); self.passes = 0; self.states = 1; self.sdata = set()
        rs = [regs_of(o) for o in ops]
        allr = lambda l: set().union(*l) if l else set()
        if op in PASSES:
            self.kind = "mfma"; self.passes = PASSES[op]
            self.w = rs[0]; self.a = rs[1]; self.b = rs[2]
            if op.startswith("v_smfmac"):
                self.c = rs[0]; self.b = self.b | rs[3]
            else: self.c = rs[3]
            self.r = self.a | self.b | self.c
        elif op == "s_nop":
            self.kind = "nop"; self.states = int(ops[0]) + 1
        elif op.startswith("buffer_") or op.startswith("global_"):
            self.kind = "vmem"
            if "lds" in mods or "_lds_" in op:
                self.r = allr(rs) | {("s", "m0")}; self.kind = "dma"
            elif "load" in op:
                self.w = rs[0]; self.r = allr(rs[1:])
            elif op in ("buffer_wbl2", "buffer_inv"):
                pass
            else:
                self.r = allr(rs)
                di = 0 if op.startswith("buffer_") else 1
                if "x3" in op or "x4" in op: self.sdata = rs[di]
                if "atomic" in op and "sc0" in mods: self.w = rs[0]
        elif op.startswith("ds_"):
            self.kind = "ds"
            if "read" in op or "permute" in op or "swizzle" in op:
                self.w = rs[0]; self.r = allr(rs[1:])
            else: self.r = allr(rs)
        elif op.startswith("v_"):
            self.kind = "valu"
            if op.startswith("v_permlane") or op.startswith("v_swap"):
                self.w = rs[0] | rs[1]; self.r = rs[0] | rs[1]
            elif op.startswith("v_nop"): pass
            else:
                self.w = rs[0]; self.r = allr(rs[1:])
                if "_co_" in op: self.w = self.w | rs[1]
                if op.startswith(("v_fmac", "v_dot2c", "v_writelane")) or "UNUSED_PRESERVE" in body or "_dpp" in op: self.r = self.r | rs[0]
                if op.startswith("v_cmpx"): self.w = self.w | {("s", "exec")}
        elif op.startswith("s_"):
            self.kind = "salu"
            if op.startswith(("s_cmp", "s_waitcnt", "s_barrier", "s_branch", "s_cbranch", "s_endpgm", "s_setprio", "s_sleep", "s_bitcmp", "s_setpc")):
                self.r = allr(rs)
            else:
                self.w = rs[0] if rs else set(); self.r = allr(rs[1:])
                if "saveexec" in op: self.w = self.w | {("s", "exec")}
                if op.startswith(("s_load", "s_memtime", "s_memrealtime", "s_buffer_load")): self.kind = "smem"
        else:
            raise ValueError(text)

def need(p, c):
    n = 0
    vw = {x for x in p.w if x[0] == "v"}
    sw = {x for x in p.w if x[0] == "s"}
    if p.kind == "mfma":
        if c.kind == "mfma":
            if vw & (c.a | c.b): n = max(n, D_TO_VALU[p.passes])
            if vw & c.c and not (vw == c.c and p.passes == c.passes): n = max(n, D_TO_C_OVERLAP[p.passes])
            if vw & c.w and not (vw & c.c): n = max(n, 0)
        else:
            if vw & (c.r | c.w): n = max(n, D_TO_VALU[p.passes])
            if c.kind == "valu" and p.c & c.w: n = max(n, C_WAR[p.passes])
    if p.kind == "valu":
        if c.kind == "mfma" and vw & c.r: n = max(n, 2)
        if c.kind == "mfma" and ("s", "exec") in sw: n = max(n, 4)
        if c.kind == "valu":
            if p.op.startswith(TRANS) and not c.op.startswith(TRANS) and vw & c.r: n = max(n, 1)
            if c.op.startswith("v_permlane") and vw & c.r: n = max(n, 2)
            if "_dpp" in c.op and vw & c.r: n = max(n, 2)
            if c.op.startswith(("v_readfirstlane", "v_readlane")) and vw & c.r: n = max(n, 1)
            if sw & c.r: n = max(n, 4 if c.op.startswith(("v_readlane", "v_writelane")) else 2)
            if ("s", "exec") in sw and (c.op.startswith(("v_permlane", "v_readlane", "v_readfirstlane")) or "_dpp" in c.op): n = max(n, 5)
            if ("sdwa" in p.op or "op_sel" in p.text) and vw & (c.r | c.w): n = max(n, 1)
        if c.kind in ("vmem", "dma") and sw & c.r: n = max(n, 5)
        if c.kind == "salu" and sw & c.r: n = max(n, 1)
    if p.kind == "salu" and ("s", "m0") in sw and c.kind == "dma": n = max(n, 1)
    if p.sdata and p.sdata & c.w: n = max(n, 2)
    return n

class Emitter:
    def __init__(self):
        self.out = []
        self.hist = []
        self.vm = []
        self.lg = []
        self.nops = 0
        self.forced = 0
        self.seen = set()
        self.count = 0
    def raw(self, text):
        self.out.append(text)
    def comment(self, text):
        self.out.append("    ; " + text)
    def label(self, name, flush=True):
        if flush and self.hist:
            self.fence()
        self.out.append(name + ":")
    def fence(self):
        worst = 0; dist = 0
        for p in reversed(self.hist):
            lim = D_TO_VALU[p.passes] if p.kind == "mfma" else 5 if p.kind == "valu" else 2
            worst = max(worst, lim - dist)
            dist += p.states
            if dist > 20: break
        if worst > 0: self._push(Ins(f"s_nop {worst-1}"))
        self.hist = []
    def _push(self, ins):
        self.out.append("    " + ins.text)
        self.hist.append(ins)
        if len(self.hist) > 24: self.hist.pop(0)
        self.count += 1
    def __call__(self, text, tag=None):
        if "\n" in text:
            for t in text.split("\n"): self(t, tag)
            return
        ins = Ins(text)
        if ins.kind in ("vmem", "dma") and len(self.vm) >= 63:
            self._push(Ins("s_waitcnt vmcnt(56)")); self.vm = self.vm[-56:]; self.forced += 1
        short = 0; dist = 0
        for p in reversed(self.hist):
            short = max(short, need(p, ins) - dist)
            dist += p.states
            if dist >= 20: break
        if short > 0:
            self._push(Ins(f"s_nop {short-1}")); self.nops += short
        self._push(ins)
        self.seen.add(tag)
        if ins.kind in ("vmem", "dma"):
            self.vm.append(tag)
            assert len(self.vm) <= 63, "vmcnt overflow"
        elif ins.kind == "ds":
            self.lg.append(tag)
        elif ins.kind == "smem":
            self.lg.append("__smem__")
        return ins
    def _n(self, q, tags):
        idx = [i for i, t in enumerate(q) if t in tags]
        if not idx: return None
        return len(q) - 1 - max(idx)
    def wait(self, vm=(), lg=()):
        parts = []
        for t in (list(vm) if vm != "all" else []) + (list(lg) if lg != "all" else []):
            assert t in self.seen, f"wait for an op that was not issued: {t}"
        if vm == "all":
            if self.vm: parts.append("vmcnt(0)"); self.vm = []
        else:
            n = self._n(self.vm, set(vm))
            if n is not None:
                parts.append(f"vmcnt({n})"); self.vm = self.vm[len(self.vm) - n:] if n else []
        if lg == "all":
            if self.lg: parts.append("lgkmcnt(0)"); self.lg = []
        else:
            n = self._n(self.lg, set(lg))
            if n is not None:
                if "__smem__" in self.lg: n = 0
                n = min(n, 15)
                parts.append(f"lgkmcnt({n})"); self.lg = self.lg[len(self.lg) - n:] if n else []
        if parts:
            self._push(Ins("s_waitcnt " + " ".join(parts)))
            return True
        return False
    def text(self):
        return "\n".join(self.out) + "\n"
```

```python
from asmx import *
from layout import *

def kernel_head(e, name):
    e.raw(f".globl {name}\n.p2align 8\n.type {name},@function\n{name}:")

def kernel_desc(name, vgpr, acc):
    return f""".amdhsa_kernel {name}
  .amdhsa_next_free_vgpr {vgpr}
  .amdhsa_next_free_sgpr 102
  .amdhsa_accum_offset {acc}
  .amdhsa_group_segment_fixed_size 0
  .amdhsa_kernarg_size 80
  .amdhsa_user_sgpr_count 2
  .amdhsa_user_sgpr_kernarg_segment_ptr 1
  .amdhsa_system_sgpr_workgroup_id_x 1
.end_amdhsa_kernel
"""

def srd(e, d, ptr, size, delta=0):
    if delta > 0:
        e(f"s_add_u32 s{d}, s{ptr}, {delta}"); e(f"s_addc_u32 s{d+1}, s{ptr+1}, 0")
    elif delta < 0:
        e(f"s_sub_u32 s{d}, s{ptr}, {-delta}"); e(f"s_subb_u32 s{d+1}, s{ptr+1}, 0")
    else:
        e(f"s_mov_b32 s{d}, s{ptr}"); e(f"s_mov_b32 s{d+1}, s{ptr+1}")
    e(f"s_mov_b32 s{d+2}, {size - delta}")
    e(f"s_mov_b32 s{d+3}, 0x20000")

class Stream:
    def __init__(self, e, cap=2):
        self.e = e; self.mf = []; self.pre = {}; self.post = {}; self.queue = []; self.cap = cap
    def mfma(self, text):
        self.mf.append(text); return len(self.mf) - 1
    def before(self, i, fn): self.pre.setdefault(i, []).append(fn)
    def after(self, i, text, tag=None): self.post.setdefault(i, []).append((text, tag))
    def side(self, earliest, deadline, text, tag=None): self.queue.append((earliest, deadline, text, tag))
    def cost(self, text):
        if callable(text): return 0
        if text.startswith("s_"): return 0
        if "store" in text: return 2
        return 1
    def emit(self):
        e = self.e; q = self.queue; qi = 0
        def put(text, tag):
            if callable(text): text()
            else: e(text, tag)
        for i, m in enumerate(self.mf):
            last = max([k for k in range(qi, len(q)) if q[k][1] <= i], default=-1)
            while qi <= last:
                put(q[qi][2], q[qi][3]); qi += 1
            for fn in self.pre.get(i, []): fn()
            e(m)
            used = 0
            for text, tag in self.post.get(i, []):
                put(text, tag); used += self.cost(text)
            while qi < len(q) and q[qi][0] <= i and used + self.cost(q[qi][2]) <= self.cap:
                put(q[qi][2], q[qi][3]); used += self.cost(q[qi][2]); qi += 1
        while qi < len(q):
            put(q[qi][2], q[qi][3]); qi += 1

def lane_fields(e, lane, g, rr, cc):
    e(f"v_and_b32 v{lane}, 63, v0")
    e(f"v_lshrrev_b32 v{g}, 4, v{lane}")
    e(f"v_bfe_u32 v{rr}, v{lane}, 2, 2")
    e(f"v_and_b32 v{cc}, 3, v{lane}")

def line_read_addrs(e, dst, g, rr, cc, t0, t1):
    e(f"v_lshl_add_u32 v{t0}, v{g}, 2, v{rr}")
    e(f"v_lshrrev_b32 v{t1}, 3, v{t0}")
    e(f"v_lshlrev_b32 v{t1}, 11, v{t1}")
    e(f"v_and_b32 v{dst}, 7, v{t0}")
    e(f"v_lshl_add_u32 v{t1}, v{dst}, 7, v{t1}")
    e(f"v_lshl_add_u32 v{t1}, v{cc}, 3, v{t1}")
    e(f"v_bfe_u32 v{t0}, v{t0}, 1, 2")
    for t in range(4):
        e(f"v_xor_b32 v{dst+t}, {t}, v{t0}")
        e(f"v_lshl_add_u32 v{dst+t}, v{dst+t}, 5, v{t1}")

def kappa(e, dst, rho, t):
    e(f"v_bfe_u32 v{dst}, v{rho}, 2, 2")
    e(f"v_lshlrev_b32 v{dst}, 3, v{dst}")
    e(f"v_lshrrev_b32 v{t}, 4, v{rho}")
    e(f"v_lshl_add_u32 v{dst}, v{t}, 2, v{dst}")
    e(f"v_and_b32 v{t}, 3, v{rho}")
    e(f"v_add_u32 v{dst}, v{dst}, v{t}")


DIAG = 0x3000000
class Diag:
    def __init__(self, e, on, kidx):
        self.e, self.on, self.k, self.n = e, on, kidx, 0
    def stamp(self):
        if not self.on: return
        assert self.n < 15
        self.e(f"s_memrealtime s[{64+2*self.n}:{65+2*self.n}]"); self.n += 1
    def cyc(self):
        if not self.on: return
        self.e(f"s_memtime s[{64+2*self.n}:{65+2*self.n}]"); self.n += 1
    def flush(self, wsptr, wave):
        if not self.on: return
        e = self.e
        self.stamp()
        e.wait(vm="all", lg="all")
        e(f"s_mov_b32 s96, s{wsptr}"); e(f"s_mov_b32 s97, s{wsptr+1}"); e(f"s_mov_b32 s98, {DIAG + 0x400000}"); e("s_mov_b32 s99, 0x20000")
        e("s_lshl_b32 s100, s2, 2")
        if wave is not None: e(f"s_add_u32 s100, s100, s{wave}")
        e("s_lshl_b32 s100, s100, 6")
        e(f"s_add_u32 s100, s100, {DIAG + self.k * 0x10000}")
        e("v_mov_b32 v0, s100")
        for i in range(self.n):
            e(f"v_mov_b32 v1, s{64+2*i}")
            e(f"buffer_store_dword v1, v0, s[96:99], 0 offen offset:{4*i}")
        e.wait(vm="all")


class Stream2:
    def __init__(self, e, cap=2, window=32, mingap=2, maxgap=8):
        self.e = e; self.mf = []; self.pre = {}; self.post = {}; self.vq = []; self.mq = []
        self.cap, self.window, self.mingap, self.maxgap = cap, window, mingap, maxgap
        self.vi = self.mi = 0; self.forced = 0
    def mfma(self, text):
        self.mf.append(text); return len(self.mf) - 1
    def before(self, i, fn): self.pre.setdefault(i, []).append(fn)
    def after(self, i, text, tag=None): self.post.setdefault(i, []).append((text, tag))
    def valu(self, earliest, deadline, text): self.vq.append((earliest, deadline, text))
    def mem(self, earliest, text, tag=None, dep=False):
        self.mq.append((earliest, text, tag, len(self.vq) if dep else 0))
    @staticmethod
    def isvm(t): return not callable(t) and t.startswith(("buffer_", "global_"))
    def _putv(self):
        self.e(self.vq[self.vi][2]); self.vi += 1
    def _putm(self):
        _, text, tag, dep = self.mq[self.mi]
        while self.vi < dep: self._putv()
        self.mi += 1
        if callable(text): text()
        else: self.e(text, tag)
    def ensure(self, tags):
        last = max([k for k in range(self.mi, len(self.mq)) if self.mq[k][2] in tags], default=-1)
        while self.mi <= last:
            self.forced += 1; self._putm()
    def wait_vm(self, tags):
        self.ensure(set(tags)); return self.e.wait(vm=tags)
    def emit(self, flush=True):
        e = self.e; lastvm = -99
        for i, m in enumerate(self.mf):
            last = max([k for k in range(self.vi, len(self.vq)) if self.vq[k][1] <= i], default=-1)
            while self.vi <= last: self._putv()
            for fn in self.pre.get(i, []): fn()
            e(m)
            used = 0; sal = 0
            if self.mi < len(self.mq):
                ear, text, tag, dep = self.mq[self.mi]
                if ear <= i and dep <= self.vi and not callable(text) and text.startswith("s_"):
                    self._putm(); sal = 1
            for text, tag in self.post.get(i, []):
                e(text, tag); used += 1
            if self.mi < len(self.mq) and used < self.cap:
                ear, text, tag, dep = self.mq[self.mi]
                if ear <= i and dep <= self.vi:
                    if self.isvm(text):
                        pend = sum(1 for k in range(self.mi, len(self.mq)) if self.mq[k][0] <= i and self.isvm(self.mq[k][1]))
                        gap = max(self.mingap, min(self.maxgap, self.window // max(pend, 1)))
                        cost = 2 if "store" in text else 1
                        if i - lastvm >= gap and not (sal and "lds" in text.split()[-1] and used == 0) and used + cost <= self.cap:
                            self._putm(); used += cost; lastvm = i
                    elif callable(text) or not text.startswith("s_"):
                        self._putm(); used += 1
                    elif used == 0:
                        self._putm(); used += 1
            while self.vi < len(self.vq) and self.vq[self.vi][0] <= i and used < self.cap:
                self._putv(); used += 1
        if flush:
            while self.vi < len(self.vq): self._putv()
            while self.mi < len(self.mq): self._putm()
```

```python
from common import *

NAME = "parallel_sum__mha_block__glu_gated_bilinear__prompt_kernel"
BIG = 10 ** 9
V_L16, V_L8, V_L8Q, V_L4, V_F0, V_PD, V_DG = 1, 2, 3, 4, 5, 6, 7
V_RD, V_RC, V_RQ = 8, 16, 22
V_DAB, V_DC, V_DD, V_DQ = 23, 24, 25, 26
V_AK1, V_AV0, V_AV1, V_AVM, V_ESC = 27, 28, 29, 30, 31
V_T, V_W = 32, 64
V_Q0, V_Q1 = 80, 88
V_TA, V_T8, V_TQ, V_TD, V_TJ, V_SG0, V_DP = 80, 81, 82, 83, 84, 94, 95
V_ACC = 96
V_SG1 = 240
def XR(s, tt): return 256 + 16 * s + 4 * tt if s < 16 else 224 + 16 * (s - 16) + 4 * tt
def HR(o, tt): return 256 + 16 * (o % 16) + 4 * tt
def ACC(t, tt): return V_ACC + 16 * t + 4 * tt
A_O = 32
A_K0, A_VA, A_VB, A_K1, A_IDX = 64, 68, 72, 76, 253
A_AK0, A_AK1, A_AV = 241, 243, 245
A_AO1, A_GV, A_T = 247, 248, 249
def A_S(q, T): return 112 + 32 * q + 64 * (T & 1)
F_DM, F_DE, F_DQ0, F_DQ1, F_DQE, F_RQ = 16, 17, 18, 19, 20, 21
F_AO, F_AOE, F_AX, F_AXQ, F_AP, F_APQ = 24, 27, 28, 29, 30, 31
F_P = 256
F_X = 336
S_W, S_RB, S_C, S_J, S_I = 3, 4, 5, 6, 7
SRD_WS, SRD_G, SRD_U, SRD_CA, SRD_CB, SRD_DA, SRD_DB, SRD_X, SRD_DBG = 8, 12, 16, 20, 24, 28, 32, 36, 40
SRD_WO, SRD_OUT = 20, 24
P_DBG, P_WS, P_X, P_WQKV, P_WO, P_WG, P_WU, P_WD, P_OUT = 44, 46, 48, 50, 52, 56, 58, 60, 62
S_M0, S_OFFAB, S_ABBEG, S_ABEND = 64, 65, 66, 67
S_OFFC, S_CBEG, S_CEND, S_STEPC = 68, 69, 70, 71
S_P = 68
S_XOFF, S_XBEG, S_XEND = 72, 73, 74
S_H0, S_H1, S_HQ, S_KV, S_QS = 75, 76, 77, 78, 79
S_OFFD, S_M0Q, S_HB, S_HO = 80, 81, 82, 83
S_FH, S_FK, S_FP, S_FO = 84, 85, 86, 87
S_GH, S_GK, S_GP, S_GO = 88, 89, 90, 91
S_MASK3 = 92
S_A, S_B, S_CNT = 94, 95, 96
S_KVS, S_M0J = 54, 55
S_HM = (72, 73, 74, 66)
S_DM = (44, 45, 48, 49)
S_M0K = 67
S_WOB, S_WOQ, S_WOM, S_PF, S_OO, S_OB, S_OE, S_OX = 75, 76, 77, 78, 79, 56, 57, 58
NS = 16
L_DQ = NS * 8192
L_WOQ = 73728
L_X = (86016, 123904)
L_JUNK = 161792
L_RED = 162816
LDS_BYTES = 163840
SPIN_MAX = 1 << 17
sr = lambda n: f"s[{n}:{n+3}]"
N_ = lambda lst: [(x, None) for x in lst]

class Gen:
    def __init__(self, diag=False, fine=False, DW=14, DX=8, DX0=3, HL=8, BK=2, NBUF=4, stagger=2, cap=2, stmode="sc1",
                 window=32, mingap=2, touch=True, nw0=6, rot=True):
        self.e = Emitter(); self.diag = diag; self.fine = fine; self.nst = 0
        self.DW, self.DX, self.HL, self.BK, self.NBUF, self.stagger, self.cap = DW, DX, HL, BK, NBUF, stagger, cap
        self.DX0, self.window, self.mingap, self.dotouch, self.nw0, self.rot = DX0, window, mingap, touch, nw0, rot
        self.tail = []
        self.stmode = stmode
        self.npoll = 0
    def stamp(self, cyc=False):
        if not self.diag: return
        e = self.e
        e(f"{'s_memtime' if cyc else 's_memrealtime'} s[98:99]")
        e.wait(lg="all")
        e(f"v_writelane_b32 v{V_DG}, s98, {self.nst}"); self.nst += 1
    def stamp2(self):
        if self.fine: return
        self.stamp(); self.stamp(True)
    def stampf(self):
        if self.fine: self.stamp()
    def put(self, lst):
        for t, tag in lst: self.e(t, tag)
    def st(self, text):
        if self.stmode == "plain": return text.replace(" sc1", "")
        if self.stmode == "off": return text.replace(sr(SRD_WS), sr(SRD_DBG))
        return text

    def poll_load(self, srdn, voff, soff, tag):
        return (f"buffer_load_dword v{V_PD}, v{voff}, {sr(srdn)}, {soff} offen sc1", tag)
    def poll_check(self, srdn, voff, soff, tag, val, mask):
        e = self.e; n = self.npoll; self.npoll += 1
        e.wait(vm=[tag])
        def test():
            e(f"v_cmp_le_u32 vcc, {val}, v{V_PD}")
            if mask != "-1": e(f"s_and_b32 vcc_lo, vcc_lo, {mask}")
            e(f"s_cmp_eq_u32 vcc_lo, {mask}")
        test()
        e(f"s_cbranch_scc0 L_spin{n}")
        e.raw(f"L_back{n}:")
        def out():
            e.label(f"L_spin{n}")
            e(f"s_mov_b32 s{S_CNT}, 0")
            e.label(f"L_spinl{n}")
            e(*self.poll_load(srdn, voff, soff, None))
            e(f"s_add_u32 s{S_CNT}, s{S_CNT}, 1")
            e.wait(vm="all")
            e(f"s_cmp_gt_u32 s{S_CNT}, {SPIN_MAX}")
            e(f"s_cbranch_scc1 L_back{n}")
            test()
            e(f"s_cbranch_scc0 L_spinl{n}")
            e(f"s_branch L_back{n}")
        self.tail.append(out)
    def signal(self, sreg, val, tmp):
        return [(f"v_mov_b32 v{tmp}, {val}", None),
                (f"buffer_store_dword v{tmp}, v{V_F0}, {sr(SRD_WS)}, s{sreg} offen sc1", "flag")]

    def setup(self):
        e = self.e
        kernel_head(e, NAME)
        e("s_cmp_ge_u32 s2, 256")
        e("s_cbranch_scc1 L_end")
        e("s_load_dwordx16 s[48:63], s[0:1], 0")
        e("s_load_dwordx4 s[44:47], s[0:1], 64")
        if self.diag: e(f"v_mov_b32 v{V_DG}, 0")
        self.stamp()
        e("v_lshrrev_b32 v32, 6, v0")
        e("v_and_b32 v33, 63, v0")
        e(f"v_readfirstlane_b32 s{S_W}, v32")
        e(f"s_and_b32 s{S_J}, s2, 7")
        e(f"s_lshr_b32 s{S_RB}, s2, 5")
        e(f"s_bfe_u32 s{S_I}, s2, 0x20003")
        e(f"s_lshl_b32 s{S_C}, s{S_J}, 2")
        e(f"s_add_u32 s{S_C}, s{S_C}, s{S_I}")
        e(f"v_lshlrev_b32 v{V_L16}, 4, v33")

    def layernorm_load(self):
        e = self.e
        e("v_lshrrev_b32 v34, 3, v33")
        e("v_and_b32 v35, 7, v33")
        e("v_mul_u32_u24 v36, 1152, v34")
        e("v_lshl_add_u32 v36, v35, 4, v36")
        e(f"s_lshl_b32 s{S_A}, s{S_RB}, 5")
        e(f"s_add_u32 s{S_A}, s{S_A}, s{S_C}")
        e(f"s_mul_i32 s{S_A}, s{S_A}, {8*1152}")
        e(f"s_add_u32 s{S_B}, s{S_A}, 1024")
        e(f"s_lshl_b32 s97, s{S_W}, 7")
        e(f"s_add_u32 s{S_A}, s{S_A}, s97")
        e(f"s_cmp_eq_u32 s{S_W}, 0")
        e(f"s_cselect_b32 s{S_B}, s{S_B}, {OOB}")
        e.wait(lg="all")
        srd(e, SRD_X, P_X, N_X)
        e(f"buffer_load_dwordx4 v[96:99], v36, {sr(SRD_X)}, s{S_A} offen", "ln")
        e(f"buffer_load_dwordx4 v[100:103], v36, {sr(SRD_X)}, s{S_A} offen offset:512", "ln")
        e(f"buffer_load_dwordx4 v[104:107], v36, {sr(SRD_X)}, s{S_B} offen", "ln")

    def code_prefetch(self):
        e = self.e
        e("s_getpc_b64 s[98:99]")
        e.raw("L_pc:")
        e(f"s_lshr_b32 s{S_A}, s2, 3")
        e(f"s_lshl_b32 s{S_A}, s{S_A}, 2")
        e(f"s_add_u32 s{S_A}, s{S_A}, s{S_W}")
        e(f"s_min_u32 s{S_A}, s{S_A}, (L_codeend-L_pc-1024)/1024")
        e(f"s_lshl_b32 s{S_A}, s{S_A}, 10")
        e(f"s_add_u32 s98, s98, s{S_A}")
        e("s_addc_u32 s99, s99, 0")
        e(f"global_load_dwordx4 v[108:111], v{V_L16}, s[98:99]", "code")

    def touch_addrs(self):
        e = self.e
        e(f"s_lshr_b32 s{S_A}, s2, 3"); e(f"s_lshl_b32 s{S_A}, s{S_A}, 2"); e(f"s_add_u32 s{S_A}, s{S_A}, s{S_W}")
        e(f"s_mul_i32 s{S_B}, s{S_A}, 18")
        e("v_min_u32 v37, 17, v33"); e(f"v_add_u32 v37, s{S_B}, v37")
        e("v_lshrrev_b32 v38, 2, v37"); e("v_mul_u32_u24 v38, 9216, v38")
        e("v_and_b32 v37, 3, v37"); e("v_lshl_add_u32 v38, v37, 8, v38")
        e(f"s_mul_i32 s{S_B}, s{S_J}, 1152")
        e(f"v_add_u32 v{V_TA}, s{S_B}, v38")
    def touch_addrs2(self):
        e = self.e
        e(f"s_lshr_b32 s{S_A}, s2, 3"); e(f"s_lshl_b32 s{S_A}, s{S_A}, 2"); e(f"s_add_u32 s{S_A}, s{S_A}, s{S_W}")
        e(f"s_mul_i32 s{S_B}, s{S_A}, 5")
        e("v_min_u32 v37, 4, v33"); e(f"v_add_u32 v37, s{S_B}, v37"); e("v_min_u32 v37, 575, v37")
        e("v_mul_u32_u24 v37, 9216, v37")
        e(f"s_mul_i32 s{S_B}, s{S_J}, 1152"); e(f"s_add_u32 s{S_B}, s{S_B}, 1024")
        e(f"v_add_u32 v{V_T8}, s{S_B}, v37")
        e(f"s_mul_i32 s{S_B}, s{S_A}, 27")
        e("v_min_u32 v37, 26, v33"); e(f"v_add_u32 v37, s{S_B}, v37")
        e("v_mul_u32_u24 v38, 10923, v37"); e("v_lshrrev_b32 v38, 16, v38")
        e("v_mul_u32_u24 v39, 6, v38"); e("v_sub_u32 v37, v37, v39")
        e("v_mul_u32_u24 v38, 3456, v38")
        e("v_lshrrev_b32 v39, 1, v37"); e("v_mul_u32_u24 v39, 1152, v39"); e("v_add_u32 v38, v38, v39")
        e("v_and_b32 v37, 1, v37"); e("v_lshl_add_u32 v38, v37, 7, v38")
        e(f"s_mul_i32 s{S_B}, s{S_J}, 144")
        e(f"v_add_u32 v{V_TQ}, s{S_B}, v38")
        e(f"s_mul_i32 s{S_B}, s{S_A}, 41")
        e("v_min_u32 v37, 40, v33"); e(f"v_add_u32 v37, s{S_B}, v37"); e("v_min_u32 v37, 5183, v37")
        e(f"v_lshlrev_b32 v{V_TD}, 7, v37")
    def touch(self, what):
        if not self.dotouch: return []
        g = lambda v, p, off=0: (f"global_load_dword v{V_TJ}, v{v}, s[{p}:{p+1}]" + (f" offset:{off}" if off else ""), "touch")
        if what == "A": return [g(V_TA, P_WG), g(V_TA, P_WU)]
        if what == "B": return [g(V_TA, P_WG, 128), g(V_TA, P_WU, 128)]
        if what == "C": return [g(V_TQ, P_WQKV), g(V_T8, P_WG), g(V_T8, P_WU)]
        if what == "D": return N_([f"s_mul_i32 s{S_A}, s{S_J}, {576*1152}", f"v_add_u32 v{V_TA}, s{S_A}, v{V_TD}"]) + [g(V_TA, P_WD)]
        if what == "O": return [g(V_TD, P_WO)]

    def w_addr_ab(self):
        e = self.e
        srd(e, SRD_G, P_WG, N_WF)
        srd(e, SRD_U, P_WU, N_WF, -1024)
        e("v_lshrrev_b32 v37, 3, v0")
        kappa(e, 38, 37, 39)
        e("v_mul_u32_u24 v38, 9216, v38")
        e("v_and_b32 v39, 6, v37")
        e("v_xor_b32 v39, v39, v35")
        e(f"v_lshl_add_u32 v{V_DAB}, v39, 4, v38")
        e("v_mul_u32_u24 v38, 1152, v37")
        e(f"v_lshl_add_u32 v{V_DD}, v39, 4, v38")
        e(f"s_lshl_b32 s{S_M0}, s{S_W}, 11")
        e(f"s_mul_i32 s{S_OFFAB}, s{S_J}, 1152")
        e(f"s_lshl_b32 s{S_A}, s{S_I}, 8")
        e(f"s_add_u32 s{S_ABBEG}, s{S_OFFAB}, s{S_A}")
        e(f"s_add_u32 s{S_ABEND}, s{S_ABBEG}, {18*32*9216}")
        e(f"s_mul_i32 s{S_XBEG}, s{S_I}, {9 if self.rot else 0}")
        e(f"s_lshr_b32 s{S_XBEG}, s{S_XBEG}, 1")
        e(f"s_mul_i32 s{S_A}, s{S_XBEG}, {32*9216}")
        e(f"s_add_u32 s{S_OFFAB}, s{S_ABBEG}, s{S_A}")

    def flags_setup(self):
        e = self.e
        srd(e, SRD_WS, P_WS, WS_SIZE)
        e(f"v_mov_b32 v37, {OOB}")
        e("v_cmp_eq_u32 vcc, 0, v33")
        e(f"v_cndmask_b32 v{V_F0}, v37, 0, vcc")
        e("v_and_b32 v37, 31, v33")
        e(f"v_lshlrev_b32 v{V_L4}, 2, v37")
        def horner(dst, terms):
            first = True
            for reg, sh in terms:
                if first: e(f"s_lshl_b32 s{dst}, s{reg}, {sh}"); first = False
                else:
                    e(f"s_add_u32 s{dst}, s{dst}, s{reg}")
                    e(f"s_lshl_b32 s{dst}, s{dst}, {sh}")
        def line(dst, terms, base):
            horner(dst, terms); e(f"s_add_u32 s{dst}, s{dst}, {base}")
        def member(dst, grp, terms):
            horner(S_A, terms); e(f"s_add_u32 s{dst}, s{grp}, s{S_A}")
        line(S_GH, [(S_RB, 3), (S_J, 2), (S_W, 7)], FL_H); member(S_FH, S_GH, [(S_I, 2)])
        line(S_GK, [(S_C, 7)], FL_K); member(S_FK, S_GK, [(S_RB, 2), (S_W, 2)])
        line(S_FP, [(S_RB, 2), (S_I, 2), (S_W, 7)], FL_P); member(S_FP, S_FP, [(S_J, 2)])
        e(f"s_lshr_b32 s{S_B}, s{S_RB}, 1")
        line(S_GP, [(S_J, 2), (S_B, 2), (S_I, 7)], FL_P)
        line(S_FO, [(S_RB, 2), (S_W, 7)], FL_O); member(S_FO, S_FO, [(S_C, 2)])
        line(S_GO, [(S_J, 2), (S_I, 7)], FL_O)
        e("v_mov_b32 v37, 0")
        for s in (S_FH, S_FK, S_FP, S_FO):
            e(f"buffer_store_dword v37, v{V_F0}, {sr(SRD_WS)}, s{s} offen sc1", "clr")

    def layernorm(self):
        e = self.e
        X, U = 96, 112
        e("v_lshrrev_b32 v37, 2, v35"); e("v_lshlrev_b32 v37, 12, v37")
        e("v_and_b32 v38, 3, v35"); e("v_lshl_add_u32 v37, v38, 8, v37")
        e("v_lshl_add_u32 v40, v34, 4, v37")
        e(f"s_lshl_b32 s{S_A}, s{S_RB}, 2"); e(f"s_lshr_b32 s{S_B}, s{S_C}, 3"); e(f"s_add_u32 s{S_A}, s{S_A}, s{S_B}")
        e(f"s_lshl_b32 s{S_CNT}, s{S_A}, 3")
        e(f"s_mul_i32 s{S_A}, s{S_A}, 73728")
        e(f"s_bfe_u32 s{S_B}, s{S_C}, 0x20001"); e(f"s_lshl_b32 s{S_B}, s{S_B}, 10"); e(f"s_add_u32 s{S_A}, s{S_A}, s{S_B}")
        e(f"s_and_b32 s{S_B}, s{S_C}, 1"); e(f"s_lshl_b32 s{S_B}, s{S_B}, 7"); e(f"s_add_u32 s{S_A}, s{S_A}, s{S_B}")
        e(f"s_add_u32 s{S_B}, s{S_A}, {8*8192}")
        e(f"s_lshl_b32 s97, s{S_W}, 13"); e(f"s_add_u32 s{S_A}, s{S_A}, s97")
        e(f"s_add_u32 s97, s{S_A}, {4*8192}")
        e(f"s_cmp_eq_u32 s{S_W}, 0")
        e(f"s_cselect_b32 s{S_B}, s{S_B}, {OOB}")
        e("s_cselect_b32 s100, 1.0, 0")
        e(f"s_cselect_b32 s{S_CNT}, s{S_CNT}, {OOB}")
        e("s_mov_b32 s101, 0xffff0000")
        e("v_lshlrev_b32 v41, 4, v34")
        e(f"v_add_u32 v41, {L_RED}, v41")
        e(f"s_lshl_b32 s98, s{S_W}, 2")
        e("v_add_u32 v42, s98, v41")
        srd(e, SRD_DBG, P_DBG, 256)
        e.wait(vm=["ln"])
        for k in range(12):
            e(f"v_lshlrev_b32 v{U+2*k}, 16, v{X+k}"); e(f"v_and_b32 v{U+2*k+1}, s101, v{X+k}")
        for k in range(4): e(f"v_add_f32 v{44+k}, v{U+k}, v{U+4+k}")
        for k in range(8, 24): e(f"v_add_f32 v{44+(k&3)}, v{44+(k&3)}, v{U+k}")
        def reduce(off):
            e("v_add_f32 v44, v44, v45"); e("v_add_f32 v46, v46, v47"); e("v_add_f32 v44, v44, v46")
            e("v_add_f32_dpp v44, v44, v44 quad_perm:[1,0,3,2] row_mask:0xf bank_mask:0xf")
            e("v_add_f32_dpp v44, v44, v44 quad_perm:[2,3,0,1] row_mask:0xf bank_mask:0xf")
            e("v_add_f32_dpp v44, v44, v44 row_half_mirror row_mask:0xf bank_mask:0xf")
            e(f"ds_write_b32 v42, v44 offset:{off}")
            e.wait(lg="all"); e("s_barrier")
            e(f"ds_read_b128 v[44:47], v41 offset:{off}")
            e.wait(lg="all")
            e("v_add_f32 v44, v44, v45"); e("v_add_f32 v46, v46, v47"); e("v_add_f32 v44, v44, v46")
            e(f"v_mul_f32 v44, {f32(1.0/576)}, v44")
        reduce(0)
        e("v_mov_b32 v48, v44")
        e("v_mul_f32 v49, s100, v48")
        for k in range(24):
            e(f"v_sub_f32 v{50+(k&3)}, v{U+k}, v{48 if k < 16 else 49}")
            if k < 4: e(f"v_mul_f32 v{44+k}, v{50+k}, v{50+k}")
            else: e(f"v_fmac_f32 v{44+(k&3)}, v{50+(k&3)}, v{50+(k&3)}")
        reduce(128)
        e("v_cvt_pk_bf16_f32 v45, v48, v44")
        e("v_lshlrev_b32 v48, 16, v45")
        e("v_and_b32 v44, s101, v45")
        e(f"v_add_f32 v44, {f32(1e-5)}, v44")
        e("v_cvt_pk_bf16_f32 v44, v44, v44"); e("v_and_b32 v44, s101, v44")
        e("v_sqrt_f32 v44, v44")
        e("v_cvt_pk_bf16_f32 v44, v44, v44"); e("v_and_b32 v44, s101, v44")
        e("v_rcp_f32 v44, v44")
        for i in range(3):
            for k in range(4 * i, 4 * i + 4):
                e(f"v_sub_f32 v{U+2*k}, v{U+2*k}, v48"); e(f"v_sub_f32 v{U+2*k+1}, v{U+2*k+1}, v48")
                e(f"v_cvt_pk_bf16_f32 v{X+k}, v{U+2*k}, v{U+2*k+1}")
                e(f"v_lshlrev_b32 v{U+2*k}, 16, v{X+k}"); e(f"v_and_b32 v{U+2*k+1}, s101, v{X+k}")
                e(f"v_mul_f32 v{U+2*k}, v{U+2*k}, v44"); e(f"v_mul_f32 v{U+2*k+1}, v{U+2*k+1}, v44")
                e(f"v_cvt_pk_bf16_f32 v{X+k}, v{U+2*k}, v{U+2*k+1}")
            e(f"buffer_store_dwordx4 v[{X+4*i}:{X+4*i+3}], v40, {sr(SRD_WS)}, s{(S_A, 97, S_B)[i]} offen sc1", "xn")

    def arrive(self):
        e = self.e
        e("v_mov_b32 v37, 1")
        e.wait(vm=["xn", "clr"])
        e("s_barrier")
        e(f"buffer_atomic_add v37, v{V_F0}, {sr(SRD_DBG)}, s{S_CNT} offen sc1", "arr")

    def addr_rest(self):
        e = self.e
        LANE, G, RR, CC = 33, 34, 35, 36
        lane_fields(e, LANE, G, RR, CC)
        e(f"v_lshlrev_b32 v{V_L8}, 3, v{LANE}")
        e(f"v_add_u32 v{V_L8Q}, 4096, v{V_L8}")
        line_read_addrs(e, V_RD, G, RR, CC, 37, 38)
        for t in range(4): e(f"v_add_u32 v{V_RD+4+t}, 0x10000, v{V_RD+t}")
        e(f"v_lshl_add_u32 v37, v{G}, 2, v{RR}")
        e("v_bfe_u32 v38, v37, 2, 1")
        e("v_lshlrev_b32 v39, 6, v37")
        e(f"v_lshl_add_u32 v39, v{CC}, 3, v39")
        e(f"v_lshl_add_u32 v{V_RC}, v38, 5, v39")
        e("v_xor_b32 v38, 1, v38")
        e("v_lshl_add_u32 v39, v38, 5, v39")
        e(f"v_min_u32 v40, 2, v{CC}")
        e(f"v_lshl_add_u32 v{V_RC+1}, v40, 11, v39")
        e("v_lshlrev_b32 v39, 5, v37")
        e(f"v_lshl_add_u32 v{V_RC+2}, v{CC}, 3, v39")
        for t in range(3): e(f"v_add_u32 v{V_RC+3+t}, 0x10000, v{V_RC+t}")
        e(f"v_add_u32 v{V_RQ}, {L_DQ}, v{V_RC+2}")
        srd(e, SRD_DA, P_WD, N_WF)
        srd(e, SRD_DB, P_WD, N_WF, 128 - 1024)
        e("v_lshrrev_b32 v37, 1, v0")
        e("v_mul_u32_u24 v38, 1152, v37")
        e("v_and_b32 v39, 1, v0")
        e(f"v_lshl_add_u32 v{V_DQ}, v39, 4, v38")
        e(f"s_mul_i32 s{S_A}, s{S_J}, {576*1152}")
        e(f"s_lshl_b32 s{S_B}, s{S_I}, 8")
        e(f"s_add_u32 s{S_OFFD}, s{S_A}, s{S_B}")
        e(f"s_mul_i32 s{S_B}, s{S_I}, 224")
        e(f"s_sub_u32 s{S_B}, 1024, s{S_B}")
        e(f"v_add_u32 v{V_DQ}, s{S_B}, v{V_DQ}")
        e(f"s_lshl_b32 s{S_M0Q}, s{S_W}, 10")
        for m in range(4):
            if self.rot: e(f"s_add_u32 s{S_A}, s{S_I}, {m}"); e(f"s_and_b32 s{S_A}, s{S_A}, 3")
            else: e(f"s_mov_b32 s{S_A}, {m}")
            e(f"s_mul_i32 s{S_A}, s{S_A}, {128*1152}"); e(f"s_add_u32 s{S_DM[m]}, s{S_OFFD}, s{S_A}")
        e(f"s_cmp_lt_u32 s{S_W}, 3")
        e("s_cbranch_scc0 L_w3")
        srd(e, SRD_CA, P_WQKV, N_WQKV)
        srd(e, SRD_CB, P_WQKV, N_WQKV, 4 * 3456 - 1024)
        e(f"s_mul_i32 s{S_OFFC}, s{S_W}, 1152")
        e(f"s_mul_i32 s{S_A}, s{S_C}, 36")
        e(f"s_add_u32 s{S_OFFC}, s{S_OFFC}, s{S_A}")
        e(f"s_mov_b32 s{S_STEPC}, {32*3456}")
        e(f"v_lshrrev_b32 v37, 2, v{LANE}")
        kappa(e, 38, 37, 39)
        e("v_mul_u32_u24 v38, 3456, v38")
        e("v_bfe_u32 v39, v37, 2, 1")
        e("v_lshlrev_b32 v39, 1, v39")
        e(f"v_xor_b32 v39, v39, v{CC}")
        e(f"s_cmp_eq_u32 s{S_W}, 1")
        e(f"s_cselect_b32 s{S_A}, 24, 32")
        e(f"s_cmp_eq_u32 s{S_W}, 2")
        e(f"s_cselect_b32 s{S_B}, 3, 2")
        e("v_lshlrev_b32 v40, 4, v39")
        e(f"v_mov_b32 v41, {OOB}")
        e(f"v_mov_b32 v42, s{S_A}")
        e("v_cmp_gt_u32 vcc, 2, v39")
        e("v_cndmask_b32 v40, v41, v40, vcc")
        e(f"v_cmp_eq_u32 vcc, s{S_B}, v39")
        e("v_cndmask_b32 v40, v40, v42, vcc")
        e(f"v_add_u32 v{V_DC}, v38, v40")
        e("s_branch L_wj")
        e.label("L_w3")
        srd(e, SRD_CA, P_WG, N_WF)
        srd(e, SRD_CB, P_WU, N_WF, -1024)
        e(f"s_mul_i32 s{S_OFFC}, s{S_J}, 1152")
        e(f"s_lshl_b32 s{S_A}, s{S_I}, 5")
        e(f"s_add_u32 s{S_OFFC}, s{S_OFFC}, s{S_A}")
        e(f"s_add_u32 s{S_OFFC}, s{S_OFFC}, 1024")
        e(f"s_mov_b32 s{S_STEPC}, {32*9216}")
        e(f"v_lshrrev_b32 v37, 1, v{LANE}")
        kappa(e, 38, 37, 39)
        e("v_mul_u32_u24 v38, 9216, v38")
        e(f"v_and_b32 v39, 1, v{LANE}")
        e(f"v_lshl_add_u32 v{V_DC}, v39, 4, v38")
        e.label("L_wj")
        e(f"s_mov_b32 s{S_CBEG}, s{S_OFFC}")
        e(f"s_mul_i32 s{S_A}, s{S_STEPC}, 18"); e(f"s_add_u32 s{S_CEND}, s{S_CBEG}, s{S_A}")
        e(f"s_mul_i32 s{S_A}, s{S_STEPC}, s{S_XBEG}"); e(f"s_add_u32 s{S_OFFC}, s{S_CBEG}, s{S_A}")
        e(f"s_lshl_b32 s{S_A}, s{S_RB}, 2"); e(f"s_add_u32 s{S_A}, s{S_A}, s{S_W}")
        e(f"s_lshl_b32 s97, s{S_A}, 3")
        e(f"s_lshl_b32 s{S_XOFF}, s{S_XBEG}, 12")
        e(f"s_mul_i32 s{S_XBEG}, s{S_A}, 73728")
        e(f"s_add_u32 s{S_XOFF}, s{S_XOFF}, s{S_XBEG}")
        e(f"s_add_u32 s{S_XEND}, s{S_XBEG}, 73728")
        e(f"s_lshl_b32 s{S_A}, s{S_RB}, 3"); e(f"s_add_u32 s{S_A}, s{S_A}, s{S_J}")
        e(f"s_lshl_b32 s{S_A}, s{S_A}, 2"); e(f"s_add_u32 s{S_A}, s{S_A}, s{S_W}")
        e(f"s_mul_i32 s{S_A}, s{S_A}, 73728"); e(f"s_add_u32 s{S_HB}, s{S_A}, {HF}")
        e(f"s_lshl_b32 s{S_B}, s{S_I}, 14"); e(f"s_add_u32 s{S_H0}, s{S_HB}, s{S_B}")
        e(f"s_add_u32 s{S_H1}, s{S_H0}, 4096")
        e(f"s_lshr_b32 s{S_B}, s{S_I}, 1"); e(f"s_add_u32 s{S_B}, s{S_B}, 16"); e(f"s_lshl_b32 s{S_B}, s{S_B}, 12")
        e(f"s_add_u32 s{S_HQ}, s{S_HB}, s{S_B}")
        e(f"s_and_b32 s{S_B}, s{S_I}, 1"); e(f"s_lshl_b32 s{S_B}, s{S_B}, 9"); e(f"s_add_u32 s{S_HQ}, s{S_HQ}, s{S_B}")
        e(f"s_mul_i32 s{S_KVS}, s{S_C}, {KV_HEAD}"); e(f"s_add_u32 s{S_KVS}, s{S_KVS}, {KV}")
        e(f"s_lshr_b32 s{S_B}, s{S_RB}, 1"); e(f"s_mul_i32 s{S_B}, s{S_B}, {KV_CHUNK}")
        e(f"s_add_u32 s{S_A}, s{S_KVS}, s{S_B}")
        e(f"s_and_b32 s{S_B}, s{S_RB}, 1"); e(f"s_lshl_b32 s{S_B}, s{S_B}, 2"); e(f"s_add_u32 s{S_B}, s{S_B}, s{S_W}")
        e(f"s_lshl_b32 s98, s{S_B}, 11"); e(f"s_add_u32 s{S_KV}, s{S_A}, s98")
        e(f"s_lshl_b32 s98, s{S_B}, 8"); e(f"s_add_u32 s98, s98, s{S_A}"); e(f"s_add_u32 s98, s98, {KV_K1}")
        e(f"s_mul_i32 s99, s{S_B}, {4*VT_GRP}"); e(f"s_add_u32 s99, s99, s{S_A}"); e(f"s_add_u32 s99, s99, {KV_VT}")
        e(f"s_mov_b32 s{S_QS}, {f32(QSCALE)}")
        e(f"v_and_b32 v37, 15, v{LANE}")
        e(f"v_mov_b32 v38, {OOB}")
        e("v_mov_b32 v40, s98")
        e(f"v_cmp_eq_u32 vcc, 1, v{G}")
        e("v_cndmask_b32 v40, v38, v40, vcc")
        e(f"v_lshl_add_u32 v{V_AK1}, v37, 3, v40")
        e("v_mov_b32 v39, 1.0"); e(f"v_mov_b32 v40, s{S_QS}")
        e(f"v_cmp_eq_u32 vcc, 0, v{G}")
        e(f"v_cndmask_b32 v{V_ESC}, v39, v40, vcc")
        e("v_lshrrev_b32 v39, 3, v37"); e(f"v_mul_u32_u24 v39, {VT_HALF}, v39")
        e("v_and_b32 v40, 7, v37"); e("v_lshl_add_u32 v39, v40, 1, v39"); e("v_add_u32 v39, s99, v39")
        e(f"v_add_u32 v40, {16*16}, v39"); e(f"v_add_u32 v41, {18*16}, v39"); e(f"v_add_u32 v42, {17*16}, v39")
        e(f"v_cmp_eq_u32 vcc, 2, v{G}")
        e(f"v_cndmask_b32 v{V_AV0}, v38, v40, vcc")
        e(f"v_cndmask_b32 v{V_AV1}, v38, v42, vcc")
        e(f"v_cmp_eq_u32 s[{S_MASK3}:{S_MASK3+1}], 3, v{G}")
        e(f"v_cndmask_b32 v{V_AV0}, v{V_AV0}, v41, s[{S_MASK3}:{S_MASK3+1}]")
        e(f"v_and_b32 v39, 1, v{G}"); e(f"v_mul_u32_u24 v39, {VT_GRP}, v39")
        e(f"v_lshrrev_b32 v40, 1, v{G}"); e(f"v_mul_u32_u24 v40, {VT_HALF}, v40")
        e("v_add3_u32 v39, v39, v40, s99")
        e(f"v_lshl_add_u32 v{V_AVM}, v37, 4, v39")
        e(f"s_mul_i32 s{S_A}, s{S_W}, 9216"); e(f"s_add_u32 s{S_KVS}, s{S_KVS}, s{S_A}")
        e(f"s_mov_b32 s{S_M0J}, {L_JUNK}")
        e(f"v_lshlrev_b32 v{V_DP}, 1, v{V_L4}")

    def late_scalars(self):
        o = []
        for m in range(4):
            if self.rot: o += [f"s_add_u32 s{S_A}, s{S_I}, {m}", f"s_and_b32 s{S_A}, s{S_A}, 3"]
            else: o += [f"s_mov_b32 s{S_A}, {m}"]
            o += [f"s_lshl_b32 s{S_A}, s{S_A}, 14", f"s_add_u32 s{S_HM[m]}, s{S_HB}, s{S_A}"]
        o += [f"s_mul_i32 s{S_M0K}, s{S_W}, 9216"]
        o += [f"s_lshl_b32 s{S_A}, s{S_J}, 7", f"s_lshl_b32 s{S_B}, s{S_RB}, 4", f"s_add_u32 s{S_A}, s{S_A}, s{S_B}",
              f"s_lshl_b32 s{S_B}, s{S_W}, 2", f"s_add_u32 s{S_A}, s{S_A}, s{S_B}", f"s_lshl_b32 s{S_A}, s{S_A}, 2",
              f"s_add_u32 s{S_A}, s{S_A}, s{S_I}", f"s_mul_i32 s{S_A}, s{S_A}, 4608", f"s_add_u32 s{S_P}, s{S_A}, {PF}"]
        o += [f"s_add_u32 s{S_P+tt}, s{S_P}, {tt*18432}" for tt in range(1, 4)]
        return N_(o)

    DORD = [0, 1, 4, 5, 8, 9, 12, 13, 2, 3, 6, 7, 10, 11, 14, 15, 16, 17]
    @staticmethod
    def step(off, inc, beg, end):
        return N_([f"s_add_u32 s{off}, s{off}, {inc}", f"s_cmp_eq_u32 s{off}, s{end}\ns_cselect_b32 s{off}, s{beg}, s{off}"])
    def issue_x(self, s):
        out = [(f"buffer_load_dwordx4 {R(XR(s,tt),4)}, v{V_L16}, {sr(SRD_WS)}, s{S_XOFF} offen offset:{tt*1024} sc1", ("x", s)) for tt in range(4)]
        return out + (self.step(S_XOFF, 4096, S_XBEG, S_XEND) if s < 17 else [])
    def issue_h(self, o):
        ks = self.DORD[o]
        out = N_([f"s_add_u32 s{S_HO}, s{S_HM[ks >> 2]}, {(ks & 3)*4096}" if ks < 16 else f"s_add_u32 s{S_HO}, s{S_HB}, {ks*4096}"])
        for tt in range(4):
            if ks < 16: out.append((f"buffer_load_dwordx4 {R(HR(o,tt),4)}, v{V_L16}, {sr(SRD_WS)}, s{S_HO} offen offset:{tt*1024} sc1", ("h", o)))
            else:
                for h in range(2): out.append((f"buffer_load_dwordx2 {R(HR(o,tt)+2*h,2)}, v{V_L8}, {sr(SRD_WS)}, s{S_HO} offen offset:{tt*1024+h*512} sc1", ("h", o)))
        return out
    def issue_w(self, n):
        out = []
        if n >= 54 and n - 54 < 5:
            m = n - 54
            if m == 4: out += N_([f"s_add_u32 s{S_A}, s{S_OFFD}, {512*1152}"])
            out += N_([f"s_add_u32 m0, s{S_M0Q}, {L_DQ + m * 4096}"])
            out.append((f"buffer_load_dwordx4 v{V_DQ}, {sr(SRD_DA)}, s{S_DM[m] if m < 4 else S_A} offen lds", ("w", n)))
        if n >= 54:
            ks = self.DORD[n - 54]
            out += N_([f"s_add_u32 s{S_OFFAB}, s{S_DM[ks >> 2]}, {(ks & 3)*32*1152}" if ks < 16 else f"s_add_u32 s{S_OFFAB}, s{S_OFFD}, {ks*32*1152}"])
        out += N_([f"s_add_u32 m0, s{S_M0}, {(n % NS) * 8192}"])
        v, a, b, so = (V_DAB, SRD_G, SRD_U, S_OFFAB) if n < 36 else (V_DC, SRD_CA, SRD_CB, S_OFFC) if n < 54 else (V_DD, SRD_DA, SRD_DB, S_OFFAB)
        out.append((f"buffer_load_dwordx4 v{v}, {sr(a)}, s{so} offen lds", ("w", n)))
        out.append((f"buffer_load_dwordx4 v{v}, {sr(b)}, s{so} offen offset:1024 lds", ("w", n)))
        if n < 35:
            out += self.step(S_OFFAB, 32 * 9216, S_ABBEG, S_ABEND)
            if n == 17: out += N_([f"s_add_u32 s{r}, s{r}, 128" for r in (S_OFFAB, S_ABBEG, S_ABEND)])
        elif 36 <= n < 53: out += self.step(S_OFFC, f"s{S_STEPC}", S_CBEG, S_CEND)
        return out
    def issue_kv(self, ch):
        out = []; base = L_X[ch & 1]; ws = sr(SRD_WS)
        for g in range(3):
            out += N_([f"s_add_u32 s{S_B}, s{S_KVS}, {ch*KV_CHUNK + g*4096}", f"s_add_u32 m0, s{S_M0K}, {base + g*4096}"])
            for k in range(4 if g < 2 else 1):
                out.append((f"buffer_load_dwordx4 v{V_L16}, {ws}, s{S_B} offen offset:{k*1024} sc1 lds", ("kv", ch)))
        out += N_([f"s_add_u32 s{S_B}, s{S_KVS}, {ch*KV_CHUNK + 36*1024}", f"s_cmp_eq_u32 s{S_W}, 0\ns_cselect_b32 s{S_B}, s{S_B}, {OOB}\ns_cselect_b32 s{S_A}, {base + 36*1024}, s{S_M0J}", f"s_mov_b32 m0, s{S_A}"])
        out.append((f"buffer_load_dwordx4 v{V_L16}, {ws}, s{S_B} offen sc1 lds", ("kv", ch)))
        return out

    def gemms(self):
        e = self.e
        DW, DX, HL, BK, NBUF, stagger = self.DW, self.DX, self.HL, self.BK, self.NBUF, self.stagger
        def order(groups):
            tiles = sorted(t for g in groups for t in g)
            o = []
            for gr in groups:
                for s in range(stagger): o += [(s, t) for t in gr]
            for s in range(stagger, 18 - stagger): o += [(s, t) for t in tiles]
            for gr in groups:
                for s in range(18 - stagger, 18): o += [(s, t) for t in gr]
            return o
        g8 = [[0, 1], [2, 3], [4, 5], [6, 7]]
        frags = []
        for p, groups in enumerate((g8, g8, [[0, 1], [2, 3], [4, 5]], [[8]] + g8)):
            o = order(groups)
            if p == 0: o = [(s, t) for s in range(stagger) for t in range(8)] + o[8 * stagger:]
            if p == 3: o = order([[6, 7, 8], [0, 1], [2, 3], [4, 5]])[:9 * (18 - stagger)] + o[9 * (18 - stagger):]
            frags += [(p, 18 * p + s, t, s) for s, t in o]
        def rd(p, n, t, half):
            slot = (n % NS) * 8192
            hi = slot >= 65536
            base = slot - 65536 * hi
            if p < 2: return V_RD + 4 * hi + (t >> 1), base + (t & 1) * 1024 + half * 4096
            if p == 3:
                if t == 8: return V_RQ, self.DORD[n - 54] * 1024 + half * 512
                return V_RD + 4 * hi + (t & 3), base + (t >> 2) * 1024 + half * 4096
            if t < 2: return V_RC + 3 * hi + 2, base + 6144 + t * 1024 + half * 512
            if t == 5: return V_RC + 3 * hi + 1, base + half * 1024
            return V_RC + 3 * hi, base + (t - 2) * 2048 + half * 1024
        st = Stream2(e, self.cap, self.window, self.mingap)
        nf = len(frags)
        first_mf = {}
        for i, (p, n, t, s) in enumerate(frags):
            w = V_W + 4 * (i % NBUF)
            for tt in range(4):
                d = R(ACC(t, tt), 4); c = "0" if s == 0 else d
                b = R(HR(s, tt) if p == 3 else XR(s, tt), 4)
                if p == 2 and t == 4: k = st.mfma(f"v_mfma_f32_16x16x32_bf16 {d}, {b}, {R(w,4)}, {c}")
                else: k = st.mfma(f"v_mfma_f32_16x16x32_bf16 {d}, {R(w,4)}, {b}, {c}")
                if s == 0: first_mf[(p, t, tt)] = k
        def read_frag(i, half):
            p, n, t, s = frags[i]
            a, off = rd(p, n, t, half)
            return f"ds_read_b64_tr_b16 {R(V_W + 4*(i%NBUF) + 2*half,2)}, v{a} offset:{off}", ("f", i)
        first_use = {}; last_use = {}
        for i, (p, n, t, s) in enumerate(frags):
            first_use.setdefault(n, i); last_use[n] = i
        LOOK = NBUF - 1
        def sync(upto):
            tags = [("w", n) for n in range(upto + 1)]
            if upto >= 54: tags += [("w", n) for n in range(54, 59)]
            st.wait_vm(tags); e("s_barrier")
        sync(BK - 1); ready = BK - 1
        for i in range(LOOK):
            for h in range(2): e(*read_frag(i, h))
        e(*self.poll_load(SRD_DBG, V_F0, "s97", "p0"))
        self.poll_check(SRD_DBG, V_F0, "s97", "p0", 8, 1)
        self.stamp()
        nx = 0; nw = self.nw0
        for s in range(self.DX0):
            self.put(self.issue_x(s)); nx += 1
        self.stamp2()
        events = {}
        def ev(n, fn, off=0): events.setdefault(first_use[n] + off, []).append(fn)
        def mem(m, lst, dep=False):
            for t_, tag in lst: st.mem(m, t_, tag, dep)
        def sig(n, tag, pairs, tmp):
            def f(m):
                st.mem(m, lambda: e.wait(vm=[tag]))
                for sreg, val in pairs: mem(m, self.signal(sreg, val, tmp))
            ev(n, f)
        def poll(nload, ncheck, srdn, voff, soff, val, mask):
            tag = ("poll", nload)
            ev(nload, lambda m: st.mem(m, *self.poll_load(srdn, voff, soff, tag)))
            ev(ncheck, lambda m: st.mem(m, lambda: self.poll_check(srdn, voff, soff, tag, val, mask)))
        self.stores = {0: [], 1: [], 2: [], 3: []}
        def paced(p, stages, per):
            for k, n in enumerate(stages):
                def f(m, k=k):
                    part = self.stores[p][k * per:(k + 1) * per]
                    mem(m, part, dep=True)
                ev(n, f)
        ev(2, lambda m: mem(m, self.touch("B")))
        ev(9, lambda m: mem(m, self.touch("C")))
        ev(25, lambda m: mem(m, self.touch("D")))
        ev(44, lambda m: mem(m, self.touch("O")))
        paced(0, range(20, 33, 2), 2)
        sig(33, "st0", [(S_FH, 1)], V_SG0)
        poll(26, 29, SRD_DBG, V_DP, "0", 8, "-1")
        paced(1, range(38, 46), 1)
        poll(42, 54 - HL - 1, SRD_WS, V_L4, f"s{S_GH}", 1, 15)
        sig(48, "st1", [(S_FH, 2)], V_SG0)
        poll(62 - HL - 3, 62 - HL - 1, SRD_WS, V_L4, f"s{S_GH}", 2, 15)
        paced(2, range(56, 60), 5)
        sig(62, "st2", [(S_FH, 3), (S_FK, 1)], V_SG1)
        poll(64, 66, SRD_WS, V_L4, f"s{S_GH}", 3, 15)
        poll(66, 67, SRD_WS, V_L4, f"s{S_GK}", 1, "-1")
        for o in range(18):
            ev(54 + o - HL if o < 16 else 66, lambda m, o=o: mem(m, self.issue_h(o)))
        st.before(4 * first_use[52], lambda: st.wait_vm(["touch"] if self.dotouch else []))
        st.before(4 * first_use[63], lambda: st.ensure({"st2"}))
        def setup_late(m):
            for t_, _ in self.att_setup() + self.final_setup():
                st.valu(m, BIG, t_)
        ev(63, setup_late)
        kv0 = False
        seen = set()
        for i, (p, n, t, s) in enumerate(frags):
            m0 = 4 * i
            if n not in seen:
                seen.add(n)
                if n % 2 == 0: st.before(m0, self.stampf)
                if p == 0:
                    st.before(m0, lambda s=s: st.wait_vm([("x", s)]))
                    for _ in range(2):
                        if nx < 18 and nx <= s + DX:
                            mem(m0 + 1, self.issue_x(nx)); nx += 1
                if p == 3: st.before(m0, lambda s=s: st.wait_vm([("h", s)]))
            if i and frags[i - 1][0] != p: st.before(m0, self.stamp2)
            st.before(m0, lambda i=i: e.wait(lg=[("f", i)]))
            for fn in events.get(i, []): fn(m0 + 1)
            j = i + LOOK
            if j < nf:
                if frags[j][1] > ready:
                    up = min(71, max(frags[j][1], ready + BK))
                    st.before(m0, lambda up=up: sync(up))
                    ready = up
                    cnt = 0
                    while nw < 72 and all(last_use[q] <= i for q in range(nw - NS + 1)) and nw <= up + DW and cnt < BK + 1:
                        mem(m0 + 1, self.issue_w(nw)); nw += 1; cnt += 1
                        if nw == 54:
                            assert i < first_use[54 - HL]
                            mem(m0 + 1, self.late_scalars())
                    if not kv0 and i >= first_use[67] and all(last_use[q] <= i for q in range(64)):
                        mem(m0 + 1, self.issue_kv(0)); kv0 = True
                for h in range(2): st.after(m0 + h, *read_frag(j, h))
            if s == 17: self.epilogue(st, p, t, m0 + 5, first_mf)
        assert nw == 72 and nx == 18 and kv0
        for p in range(3): assert all(any(q[1] == x[0] for q in st.mq) for x in self.stores[p])
        st.emit()
        self.forced = st.forced

    def epilogue(self, st, p, t, ear, first_mf):
        ws = sr(SRD_WS)
        nxt = lambda tiles: min([first_mf.get((p + 1, t_, tt), BIG) for t_ in tiles for tt in range(4)])
        V = lambda dl, text: st.valu(ear, dl, text)
        ST = lambda text: self.stores[p].append((self.st(text), f"st{p}"))
        if p < 2:
            if t % 2 == 0: return
            pr = t >> 1; dl = nxt([t - 1, t]); T = V_T + 16 * ((pr >> 1) & 1)
            for tt in range(4):
                g_, u_ = ACC(t - 1, tt), ACC(t, tt)
                for r in range(4): V(dl, f"v_mul_f32 v{g_+r}, v{g_+r}, v{u_+r}")
                for r in range(2): V(dl, f"v_cvt_pk_bf16_f32 v{T+4*tt+2*(pr&1)+r}, v{g_+2*r}, v{g_+2*r+1}")
                if pr & 1: ST(f"buffer_store_dwordx4 {R(T+4*tt,4)}, v{V_L16}, {ws}, s{S_H0 if pr == 1 else S_H1} offen offset:{tt*1024} sc1")
            if pr == 3 and p == 0:
                self.stores[0] += N_([f"s_add_u32 s{S_H0}, s{S_H0}, 8192", f"s_add_u32 s{S_H1}, s{S_H1}, 8192"])
        elif p == 2:
            if t == 0: return
            dl = nxt([0, 1] if t == 1 else [t])
            if t == 1:
                for tt in range(4):
                    g_, u_ = ACC(0, tt), ACC(1, tt)
                    for r in range(4): V(dl, f"v_mul_f32 v{g_+r}, v{g_+r}, v{u_+r}")
                    for r in range(2): V(dl, f"v_cvt_pk_bf16_f32 v{V_T+2*tt+r}, v{g_+2*r}, v{g_+2*r+1}")
                    ST(f"buffer_store_dwordx2 {R(V_T+2*tt,2)}, v{V_L8}, {ws}, s{S_HQ} offen offset:{tt*1024} sc1")
            elif t in (2, 3, 4):
                T = V_Q0 if t == 2 else V_T + 8 * (t - 2)
                for tt in range(4):
                    a_ = ACC(t, tt)
                    if t == 2:
                        for r in range(4): V(dl, f"v_mul_f32 v{a_+r}, s{S_QS}, v{a_+r}")
                    for r in range(2): V(dl, f"v_cvt_pk_bf16_f32 v{T+2*tt+r}, v{a_+2*r}, v{a_+2*r+1}")
                for pr in range(2):
                    for r in range(2): V(BIG, f"v_permlane16_swap_b32 v{T+4*pr+r}, v{T+4*pr+2+r}")
                for pr in range(2):
                    if t == 3: ST(f"buffer_store_dwordx4 {R(T+4*pr,4)}, v{V_L16}, {ws}, s{S_KV} offen offset:{pr*1024} sc1")
                    if t == 4: ST(f"buffer_store_dwordx4 {R(T+4*pr,4)}, v{V_AVM}, {ws}, 0 offen offset:{pr*2*VT_GRP} sc1")
            else:
                T = V_T + 24; pos = [0, 2, 1, 3]; ONE = V_T + 28
                V(dl, f"v_mov_b32 v{ONE}, 0x3f803f80")
                for tt in range(4):
                    a_ = ACC(5, tt)
                    for r in range(2): V(dl, f"v_mul_f32 v{a_+r}, v{V_ESC}, v{a_+r}")
                    V(dl, f"v_cvt_pk_bf16_f32 v{T+pos[tt]}, v{a_}, v{a_+1}")
                    V(dl, f"v_cndmask_b32 v{T+pos[tt]}, v{T+pos[tt]}, v{ONE}, s[{S_MASK3}:{S_MASK3+1}]")
                for pr in range(2): ST(f"buffer_store_dwordx2 {R(T+2*pr,2)}, v{V_AK1}, {ws}, 0 offen offset:{pr*128} sc1")
                for tt in range(4):
                    ST(f"buffer_store_short v{T+pos[tt]}, v{V_AV0}, {ws}, 0 offen offset:{tt*VT_GRP} sc1")
                    ST(f"buffer_store_short_d16_hi v{T+pos[tt]}, v{V_AV1}, {ws}, 0 offen offset:{tt*VT_GRP} sc1")
                V(BIG, f"v_mov_b32 v{ONE}, 256")
                V(BIG, f"v_cmp_gt_u32 s[100:101], v{ONE}, v{V_L8}")
                for q in range(2):
                    Q = V_Q1 + 4 * q
                    V(BIG, f"v_mov_b32 v{Q}, v{T+pos[2*q]}"); V(BIG, f"v_mov_b32 v{Q+1}, v{T+pos[2*q+1]}")
                    V(BIG, f"v_mov_b32 v{Q+2}, 0")
                    V(BIG, f"v_permlane16_swap_b32 v{Q}, v{Q+1}")
                    V(BIG, f"v_cndmask_b32 v{Q}, 0, v{Q}, s[100:101]")
                    V(BIG, f"v_mov_b32 v{Q+1}, 0"); V(BIG, f"v_mov_b32 v{Q+3}, v{Q}")
        else:
            if t == 8:
                for tt in range(4):
                    a_ = ACC(t, tt)
                    for r in range(2): V(BIG, f"v_cvt_pk_bf16_f32 v{a_+r}, v{a_+2*r}, v{a_+2*r+1}")
                    ST(f"buffer_store_dwordx2 {R(a_,2)}, v{V_L8Q}, {ws}, s{S_P+tt} offen sc1")
            elif t & 1:
                pr = t >> 1
                for tt in range(4):
                    d = ACC(t - 1, tt)
                    for h in range(2):
                        a_ = ACC(t - 1 + h, tt)
                        for r in range(2): V(BIG, f"v_cvt_pk_bf16_f32 v{d+2*h+r}, v{a_+2*r}, v{a_+2*r+1}")
                    ST(f"buffer_store_dwordx4 {R(d,4)}, v{V_L16}, {ws}, s{S_P+tt} offen offset:{pr*1024} sc1")

    def att_setup(self):
        T0, T1, T2 = A_T, A_T + 1, A_T + 2
        o = [f"v_and_b32 v{T0}, 63, v0", f"v_and_b32 v{T1}, 31, v0",
             f"v_add_u32 v{A_AK0}, {L_X[0]}, v{V_L16}",
             f"v_lshlrev_b32 v{A_AK1}, 3, v{T1}", f"v_add_u32 v{A_AK1}, {L_X[0]}, v{A_AK1}",
             f"v_lshrrev_b32 v{T2}, 5, v{T0}", f"v_mul_u32_u24 v{T2}, {VT_HALF}, v{T2}",
             f"v_min_u32 v{A_GV}, 18, v{T1}", f"v_lshl_add_u32 v{A_GV}, v{A_GV}, 4, v{T2}",
             f"v_mov_b32 v{T2}, {OOB}",
             f"v_cmp_gt_u32 s[100:101], 19, v{T1}", f"v_cndmask_b32 v{A_AV}, v{T2}, v{A_GV}, s[100:101]",
             f"v_cmp_eq_u32 s[100:101], 22, v{T1}", f"v_cndmask_b32 v{A_GV}, v{A_AV}, v{A_GV}, s[100:101]",
             f"v_add_u32 v{A_AV}, {L_X[0]}, v{A_GV}"]
        o += [f"v_add_u32 v{a+1}, {KV_CHUNK}, v{a}" for a in (A_AK0, A_AK1, A_AV)]
        o += [f"v_cmp_gt_u32 s[100:101], 32, v{T0}", f"v_cndmask_b32 v{A_AO1}, v{T2}, v{V_L4}, s[100:101]", f"v_mov_b32 v{A_IDX}, 0xdddd"]
        o += [f"v_mov_b32 v{A_O+i}, 0" for i in range(32)]
        return N_(o)

    def final_setup(self):
        o = []; a = o.append
        T0, T1, T2, T3 = A_T, A_T + 1, A_T + 2, A_T + 3
        SA, SB = 100, 101
        srd(a, SRD_WO, P_WO, N_WO); srd(a, SRD_OUT, P_OUT, N_X)
        def rows(rho, dm, de):
            a(f"v_bfe_u32 v{T2}, v{rho}, 3, 1"); a(f"v_mul_u32_u24 v{dm}, 18, v{T2}")
            a(f"v_lshrrev_b32 v{T2}, 4, v{rho}"); a(f"v_lshl_add_u32 v{dm}, v{T2}, 3, v{dm}")
            a(f"v_and_b32 v{T3}, 7, v{rho}"); a(f"v_add_u32 v{dm}, v{dm}, v{T3}")
            a(f"v_bfe_u32 v{T3}, v{rho}, 2, 2"); a(f"v_lshlrev_b32 v{T3}, 2, v{T3}")
            a(f"v_lshl_add_u32 v{T3}, v{T2}, 1, v{T3}"); a(f"v_bfe_u32 v{T2}, v{rho}, 1, 1"); a(f"v_add_u32 v{T3}, v{T3}, v{T2}")
            a(f"v_mul_u32_u24 v{de}, 18, v{T3}"); a(f"v_and_b32 v{T2}, 1, v{rho}"); a(f"v_add3_u32 v{de}, v{de}, v{T2}, 16")
        a(f"v_lshrrev_b32 v{T0}, 3, v0")
        rows(T0, F_DM, F_DE)
        a(f"v_and_b32 v{T2}, 6, v{T0}"); a(f"v_and_b32 v{T3}, 7, v0"); a(f"v_xor_b32 v{T1}, v{T2}, v{T3}"); a(f"v_lshlrev_b32 v{T1}, 4, v{T1}")
        for r in (F_DM, F_DE):
            a(f"v_mul_u32_u24 v{r}, 1152, v{r}"); a(f"v_add_u32 v{r}, v{r}, v{T1}")
        a(f"s_lshl_b32 s{SA}, s{S_W}, 3")
        a(f"v_and_b32 v{T0}, 7, v0"); a(f"v_add_u32 v{T0}, s{SA}, v{T0}")
        rows(T0, F_DQ0, F_DQE)
        a(f"v_bfe_u32 v{T1}, v0, 3, 3")
        a(f"v_mul_u32_u24 v{T2}, 288, v{T1}"); a(f"v_add_u32 v{F_DQE}, v{F_DQE}, v{T2}"); a(f"v_mul_u32_u24 v{F_DQE}, 1152, v{F_DQE}")
        a(f"s_lshl_b32 s{SA}, s{S_RB}, 1" if self.rot else f"s_mov_b32 s{SA}, 0")
        a(f"v_add_u32 v{T1}, s{SA}, v{T1}")
        a(f"v_add_u32 v{T2}, 8, v{T1}"); a(f"v_and_b32 v{T2}, 15, v{T2}"); a(f"v_mul_u32_u24 v{T2}, 36, v{T2}")
        a(f"v_add_u32 v{F_DQ1}, v{F_DQ0}, v{T2}"); a(f"v_mul_u32_u24 v{F_DQ1}, 1152, v{F_DQ1}")
        a(f"v_and_b32 v{T2}, 15, v{T1}"); a(f"v_mul_u32_u24 v{T2}, 36, v{T2}")
        a(f"v_add_u32 v{F_DQ0}, v{F_DQ0}, v{T2}"); a(f"v_mul_u32_u24 v{F_DQ0}, 1152, v{F_DQ0}")
        a(f"v_bfe_u32 v{T0}, v0, 2, 4")
        a(f"v_lshrrev_b32 v{T1}, 3, v{T0}"); a(f"v_mul_u32_u24 v{T1}, 3072, v{T1}")
        a(f"v_and_b32 v{T0}, 7, v{T0}"); a(f"v_lshl_add_u32 v{T1}, v{T0}, 4, v{T1}")
        a(f"v_and_b32 v{T0}, 1, v0"); a(f"v_lshl_add_u32 v{T1}, v{T0}, 3, v{T1}")
        a(f"v_add_u32 v{F_RQ}, {L_WOQ}, v{T1}")
        a(f"v_bfe_u32 v{T0}, v0, 4, 2"); a(f"v_and_b32 v{T1}, 15, v0")
        a(f"v_lshrrev_b32 v{T2}, 1, v{T0}"); a(f"v_lshlrev_b32 v{T2}, 16, v{T2}")
        a(f"v_and_b32 v{T3}, 1, v{T0}"); a(f"v_lshl_add_u32 v{T2}, v{T3}, 9, v{T2}"); a(f"v_lshl_add_u32 v{F_AO}, v{T1}, 4, v{T2}")
        a(f"v_lshlrev_b32 v{T2}, 15, v{T0}"); a(f"v_lshl_add_u32 v{F_AOE}, v{T1}, 2, v{T2}")
        a(f"s_lshl_b32 s{S_OX}, s{S_C}, 2"); a(f"s_add_u32 s{S_OX}, s{S_OX}, s{S_W}")
        a(f"s_lshl_b32 s{SA}, s{S_OX}, 4")
        a(f"v_add_u32 v{T2}, s{SA}, v{T1}"); a(f"v_mul_u32_u24 v{T2}, 1152, v{T2}"); a(f"v_lshl_add_u32 v{T2}, v{T0}, 3, v{T2}")
        a(f"s_lshl_b32 s{S_WOB}, s{S_RB}, 7"); a(f"v_add_u32 v{F_AX}, s{S_WOB}, v{T2}")
        a(f"s_lshl_b32 s{S_WOQ}, s{S_RB}, 4"); a(f"s_add_u32 s{S_WOQ}, s{S_WOQ}, 1024"); a(f"v_add_u32 v{T2}, s{S_WOQ}, v{T2}")
        a(f"s_and_b32 s{S_PF}, s{S_RB}, 1"); a(f"s_lshl_b32 s{SB}, s{S_PF}, 11"); a(f"v_add_u32 v{F_AP}, s{SB}, v{V_L16}")
        a(f"s_lshl_b32 s{SB}, s{S_PF}, 8"); a(f"v_add_u32 v{T1}, s{SB}, v{V_L8Q}")
        a(f"v_mov_b32 v{T3}, {OOB}"); a(f"v_cmp_gt_u32 s[100:101], 2, v{T0}")
        a(f"v_cndmask_b32 v{F_AXQ}, v{T3}, v{T2}, s[100:101]")
        a(f"v_cndmask_b32 v{F_APQ}, v{T3}, v{T1}, s[100:101]")
        a(f"s_lshr_b32 s{SA}, s{S_RB}, 1"); a(f"s_lshl_b32 s{SB}, s{S_OX}, 2"); a(f"s_add_u32 s{SA}, s{SA}, s{SB}")
        a(f"s_mul_i32 s{S_PF}, s{SA}, 4608"); a(f"s_add_u32 s{S_PF}, s{S_PF}, {PF}")
        a(f"s_lshr_b32 s{SA}, s{S_OX}, 1"); a(f"s_lshl_b32 s{SA}, s{SA}, 10")
        a(f"s_and_b32 s{SB}, s{S_OX}, 1"); a(f"s_lshl_b32 s{SB}, s{SB}, 8"); a(f"s_add_u32 s{SA}, s{SA}, s{SB}")
        a(f"s_add_u32 s{S_OB}, s{SA}, {OF0}"); a(f"s_add_u32 s{S_OE}, s{S_OB}, {16*131072}")
        a(f"s_lshl_b32 s{SA}, s{S_RB}, 18" if self.rot else f"s_mov_b32 s{SA}, 0"); a(f"s_add_u32 s{S_OO}, s{S_OB}, s{SA}")
        a(f"s_lshl_b32 s{S_OX}, s{S_OX}, 6"); a(f"s_add_u32 s{S_OX}, s{S_OX}, {OF1}")
        a(f"s_mul_i32 s{S_WOM}, s{S_W}, 3072"); a(f"s_add_u32 s{S_WOM}, s{S_WOM}, {L_WOQ}")
        return N_(o)
    def issue_wo(self, stages):
        o = []; wo = sr(SRD_WO)
        for u in stages:
            if u == 9:
                for m in range(3):
                    o += N_([f"s_add_u32 m0, s{S_WOM}, {m*1024}"])
                    o.append((f"buffer_load_dwordx4 v{(F_DQ0, F_DQ1, F_DQE)[m]}, {wo}, s{S_WOQ} offen lds", "wo"))
                continue
            d = F_DM if u < 8 else F_DE
            if u < 8:
                if self.rot: o += N_([f"s_add_u32 s{S_A}, s{S_RB}, {u}", f"s_and_b32 s{S_A}, s{S_A}, 7", f"s_mul_i32 s{S_A}, s{S_A}, {72*1152}"])
                else: o += N_([f"s_mov_b32 s{S_A}, {u*72*1152}"])
                o += N_([f"s_add_u32 s{S_A}, s{S_A}, s{S_WOB}"])
            else: o += N_([f"s_mov_b32 s{S_A}, s{S_WOB}"])
            o += N_([f"s_add_u32 m0, s{S_M0}, {u*8192}", f"s_add_u32 s{S_B}, s{S_A}, {(36 if u < 8 else 288)*1152 - 1024}"])
            o.append((f"buffer_load_dwordx4 v{d}, {wo}, s{S_A} offen lds", "wo"))
            o.append((f"buffer_load_dwordx4 v{d}, {wo}, s{S_B} offen offset:1024 lds", "wo"))
        return o
    def issue_part(self):
        o = []; ws = sr(SRD_WS)
        for t in range(4): o.append((f"buffer_load_dwordx2 {R(F_X+2*t,2)}, v{F_AX}, {sr(SRD_X)}, 0 offen offset:{t*32}", "xres"))
        o.append((f"buffer_load_dwordx2 {R(F_X+8,2)}, v{F_AXQ}, {sr(SRD_X)}, 0 offen", "xres"))
        for j in range(8):
            for pr in range(2): o.append((f"buffer_load_dwordx4 {R(F_P+10*j+4*pr,4)}, v{F_AP}, {ws}, s{S_PF} offen offset:{pr*1024} sc1", ("part", j)))
            o.append((f"buffer_load_dwordx2 {R(F_P+10*j+8,2)}, v{F_APQ}, {ws}, s{S_PF} offen sc1", ("part", j)))
            if j < 7: o += N_([f"s_add_u32 s{S_PF}, s{S_PF}, {128*4*4608}"])
        return o

    def attention(self):
        e = self.e; ws = sr(SRD_WS)
        self.stamp2()
        Sb = A_S
        sl = lambda T: (T // 16) & 1
        rdK0 = lambda T: (f"ds_read_b128 {R(A_K0,4)}, v{A_AK0+sl(T)} offset:{(T%16)*1024}", ("k0", T))
        rdK1 = lambda T: (f"ds_read_b64 {R(A_K1,2)}, v{A_AK1+sl(T)} offset:{KV_K1+((T%16)//2)*256}", ("k1", T // 2))
        rdV = lambda T, h: (f"ds_read_b128 {R(A_VB if h else A_VA,4)}, v{A_AV+sl(T)} offset:{KV_VT+((T%16)*2+h)*VT_GRP}", ("v", T, h))
        qk0 = lambda q, T, c="0": f"v_mfma_f32_32x32x16_bf16 {R(Sb(q,T),16)}, {R(A_K0,4)}, {R(V_Q0+4*q,4)}, {c}"
        qk1 = lambda q, T: f"v_mfma_f32_32x32x8bf16_1k {R(Sb(q,T),16)}, {R(A_K1,2)}, {R(V_Q1+4*q+2*(T&1),2)}, {R(Sb(q,T),16)}"
        pv = lambda q, T, h: f"v_smfmac_f32_32x32x32_bf16 {R(A_O+16*q,16)}, {R(A_VB if h else A_VA,4)}, {R(Sb(q,T)+8*h,8)}, v{A_IDX}"
        self.qk0, self.qk1, self.pv, self.Sb = qk0, qk1, pv, Sb
        e.wait(vm=[("kv", 0)]); e("s_barrier")
        e(*rdK0(0)); e(*rdK1(0)); e(*rdV(0, 0))
        e.wait(lg=[("k1", 0)])
        e(qk0(0, 0)); e(qk0(1, 0)); e(*rdK0(1)); e(qk1(0, 0)); e(qk1(1, 0))
        lanes = {"a": [], "b": []}
        def later(lane, T, lst):
            for x in lst: lanes[lane].append((T,) + (x if isinstance(x, tuple) else (x, None)))
        later("a", 0, self.issue_kv(1))
        later("a", 10, self.issue_wo(range(0, 3)))
        later("a", 17, self.issue_kv(2))
        later("a", 27, self.issue_wo(range(3, 5)))
        later("a", 33, self.issue_kv(3))
        later("a", 43, self.issue_wo(range(5, 10)))
        later("b", 0, self.stores[3])
        later("b", 23, [lambda: e.wait(vm=["st3"])] + self.signal(S_FP, 1, V_SG1))
        later("b", 28, [self.poll_load(SRD_WS, V_L4, f"s{S_GP}", "pp")])
        later("b", 31, [lambda: self.poll_check(SRD_WS, V_L4, f"s{S_GP}", "pp", 1, 255)])
        later("b", 31, self.issue_part())
        idx = {"a": 0, "b": 0}
        def background(lane, T, nsal, vm):
            q = lanes[lane]
            while idx[lane] < len(q) and q[idx[lane]][0] <= T:
                _, text, tag = q[idx[lane]]
                isvm = Stream2.isvm(text)
                if isvm:
                    if not vm: return
                    vm -= 1
                else:
                    if not nsal: return
                    nsal -= 1
                idx[lane] += 1
                if callable(text): text()
                else: e(text, tag)
                if isvm: return
        NT = 64
        for T in range(NT):
            nx = T + 1 < NT
            if T % 4 == 0: self.stampf()
            for slot in range(32):
                q, i = slot >> 4, slot & 15
                if slot == 2:
                    if T > 0: e(pv(1, T - 1, 1))
                    e(*rdV(T, 1))
                    if nx: e.wait(lg=[("k0", T + 1)])
                if slot == 6:
                    if nx: e(qk0(0, T + 1))
                    if not e.wait(lg=[("v", T, 0)]): background("a", T, 1, 0)
                if slot == 10:
                    e(pv(0, T, 0))
                    if nx: e.wait(lg=[("k1", (T + 1) // 2)])
                    background("a", T, 2, 0)
                if slot == 14:
                    if nx: e(qk1(0, T + 1))
                    e.wait(lg=[("v", T, 1)])
                    if T in (16, 32): e("s_barrier")
                if slot == 18:
                    e(pv(0, T, 1))
                    if T % 16 == 14 and T + 2 < NT:
                        assert all(x[2] != ("kv", (T + 2) // 16) for x in lanes["a"][idx["a"]:])
                        e.wait(vm=[("kv", (T + 2) // 16)]); e("s_barrier")
                    elif T == 62:
                        assert idx["a"] == len(lanes["a"])
                        e.wait(vm=["wo"]); e("s_barrier")
                    else: background("a", T, 2, 1)
                if slot == 22 and nx:
                    e(qk0(1, T + 1))
                    if T + 2 < NT: e(*rdK0(T + 2))
                if slot == 26:
                    e(pv(1, T, 0))
                    if nx: e(*rdV(T + 1, 0))
                    background("b", T, 2, 1)
                if slot == 30 and nx:
                    e(qk1(1, T + 1))
                    if T % 2 == 0 and T + 2 < NT: e(*rdK1(T + 2))
                e(f"v_exp_f32 v{Sb(q,T)+i}, v{Sb(q,T)+i}")
        assert all(idx[l] == len(lanes[l]) for l in lanes), (idx, {l: len(lanes[l]) for l in lanes})
        e(pv(1, NT - 1, 1))
        self.stamp2()
        e(f"s_mov_b32 s{S_A}, {f32(2.0**-64)}"); e(f"s_mov_b32 s{S_B}, {f32(2.0**64)}"); e(f"s_mov_b32 s97, {f32(2.0**120)}")
        e("s_mov_b64 s[100:101], exec")
        for q in range(2):
            O = A_O + 16 * q
            e(f"v_max3_f32 v{A_T}, |v{O}|, |v{O+1}|, |v{O+2}|")
            for r in (3, 5, 7): e(f"v_max3_f32 v{A_T}, v{A_T}, |v{O+r}|, |v{O+r+1}|")
            e(f"v_max_f32 v{A_T}, v{A_T}, |v{O+9}|")
            for cmp in (f"v_cmp_le_f32 vcc, s{S_A}, v{O+10}", f"v_cmp_ge_f32 vcc, s{S_B}, v{O+10}", f"v_cmp_ge_f32 vcc, s97, v{A_T}"):
                e(cmp); e("s_and_b64 s[100:101], s[100:101], vcc")
        e("s_cmp_eq_u64 s[100:101], exec")
        e("s_cbranch_scc0 L_slow")
        e.label("L_fin")
        e(f"s_lshl_b32 s{S_A}, s{S_C}, 3"); e(f"s_add_u32 s{S_A}, s{S_A}, s{S_RB}")
        e(f"s_lshl_b32 s{S_A}, s{S_A}, 2"); e(f"s_add_u32 s{S_A}, s{S_A}, s{S_W}")
        e(f"s_lshl_b32 s{S_B}, s{S_A}, 8"); e(f"s_add_u32 s{S_B}, s{S_B}, {OF1}")
        e(f"s_lshl_b32 s{S_A}, s{S_A}, 11"); e(f"s_add_u32 s{S_A}, s{S_A}, {OF0}")
        for q in range(2):
            O = A_O + 16 * q; T = 64 + 6 * q
            e(f"v_rcp_f32 v{O+10}, v{O+10}")
            for r in range(10): e(f"v_mul_f32 v{O+r}, v{O+r}, v{O+10}")
            for r in range(5): e(f"v_cvt_pk_bf16_f32 v{T+r}, v{O+2*r}, v{O+2*r+1}")
            e(f"buffer_store_dwordx4 {R(T,4)}, v{V_L16}, {ws}, s{S_A} offen offset:{q*1024} sc1", "sto")
            e(f"buffer_store_dword v{T+4}, v{A_AO1}, {ws}, s{S_B} offen offset:{q*128} sc1", "sto")
        self.tail.append(self.slow_path)

    def slow_path(self):
        e = self.e; ws = sr(SRD_WS); qk0, qk1, pv, Sb = self.qk0, self.qk1, self.pv, self.Sb
        e.label("L_slow")
        A1 = A_T
        e(f"v_lshlrev_b32 v{A1}, 1, v{V_L4}")
        def loop(tag, body):
            e(f"s_mul_i32 s{S_A}, s{S_C}, {KV_HEAD}"); e(f"s_add_u32 s{S_A}, s{S_A}, {KV}")
            e(f"s_add_u32 s{S_B}, s{S_A}, {KV_K1}"); e(f"s_add_u32 s97, s{S_A}, {KV_VT}")
            e(f"s_mov_b32 s{S_CNT}, 0")
            e.label(f"L_slow_{tag}")
            e(f"buffer_load_dwordx2 {R(A_K1,2)}, v{A1}, {ws}, s{S_B} offen sc1")
            for t in range(2):
                e(f"buffer_load_dwordx4 {R(A_K0,4)}, v{V_L16}, {ws}, s{S_A} offen offset:{t*1024} sc1")
                e(f"buffer_load_dwordx4 {R(A_VA,4)}, v{A_GV}, {ws}, s97 offen offset:{2*t*VT_GRP} sc1")
                e(f"buffer_load_dwordx4 {R(A_VB,4)}, v{A_GV}, {ws}, s97 offen offset:{(2*t+1)*VT_GRP} sc1")
                e.wait(vm="all")
                body(t)
                e.fence()
            e(f"s_add_u32 s{S_A}, s{S_A}, 2048"); e(f"s_add_u32 s{S_B}, s{S_B}, 256"); e(f"s_add_u32 s97, s97, {4*VT_GRP}")
            e(f"s_add_u32 s{S_CNT}, s{S_CNT}, 1")
            e(f"s_and_b32 s98, s{S_CNT}, 7")
            e(f"s_cbranch_scc1 L_slow_{tag}")
            e(f"s_add_u32 s{S_A}, s{S_A}, {KV_CHUNK-16384}"); e(f"s_add_u32 s{S_B}, s{S_B}, {KV_CHUNK-2048}"); e(f"s_add_u32 s97, s97, {KV_CHUNK-32*VT_GRP}")
            e(f"s_cmp_lt_u32 s{S_CNT}, 32")
            e(f"s_cbranch_scc1 L_slow_{tag}")
            e.fence()
        M = lambda q: (96, 128)[q]
        for q in range(2): e(f"v_mov_b32 v{M(q)}, 0xff800000")
        def body_max(t):
            for q in range(2): e(qk0(q, t))
            for q in range(2): e(qk1(q, t))
            for q in range(2):
                for r in range(0, 16, 2): e(f"v_max3_f32 v{M(q)}, v{M(q)}, v{Sb(q,t)+r}, v{Sb(q,t)+r+1}")
        loop("max", body_max)
        for q in range(2):
            m = M(q)
            e(f"v_mov_b32 v{m+1}, v{m}"); e(f"v_permlane32_swap_b32 v{m}, v{m+1}")
            e(f"v_max_f32 v{m}, v{m}, v{m+1}"); e(f"v_sub_f32 v{m}, 0, v{m}")
            for r in range(1, 16): e(f"v_mov_b32 v{m+r}, v{m}")
        for i in range(32): e(f"v_mov_b32 v{A_O+i}, 0")
        def body_sum(t):
            for q in range(2): e(qk0(q, t, R(M(q), 16)))
            for q in range(2): e(qk1(q, t))
            for q in range(2):
                for r in range(16): e(f"v_exp_f32 v{Sb(q,t)+r}, v{Sb(q,t)+r}")
            for q in range(2):
                for h in range(2): e(pv(q, t, h))
        loop("sum", body_sum)
        e("s_branch L_fin")

    def final(self):
        e = self.e; ws = sr(SRD_WS)
        FA, FB, FT, U0, U1 = 76, 96, 64, 168, 169
        free = list(range(352, 512, 4)) + list(range(172, 240, 4)) + list(range(32, 64, 4))
        frags = [(s, t) for s in range(18) for t in range(5)]
        wreg = []
        def read_frag():
            i = len(wreg); s, t = frags[i]; wreg.append(free.pop(0))
            if len(e.lg) > 10: e.wait(lg=[e.lg[-9]])
            for h in range(2):
                if t == 4: a, off = F_RQ, (s >> 3) * 1024 + (s & 7) * 128 + h * 6144
                else:
                    slot = (s >> 1) * 8192; hi = slot >= 65536
                    a, off = V_RD + 4 * hi + t, slot - 65536 * hi + (s & 1) * 1024 + h * 4096
                e(f"ds_read_b64_tr_b16 {R(wreg[i]+2*h,2)}, v{a} offset:{off}", ("g", i))
        for _ in range(30): read_frag()
        e.wait(vm=["sto"])
        self.put(self.signal(S_FO, 1, V_SG1))
        self.stamp()
        e("s_mov_b32 s101, 0xffff0000")
        for k in range(10):
            e(f"v_accvgpr_read_b32 v{U0}, {R(F_X+k)}")
            e(f"v_lshlrev_b32 v{FA+2*k}, 16, v{U0}"); e(f"v_and_b32 v{FA+2*k+1}, s101, v{U0}")
        free += [336, 340, 344, 348]
        nxt = 256
        for j in range(8):
            for k in range(10):
                e(f"v_accvgpr_read_b32 v{U0}, {R(F_P+10*j+k)}")
                e(f"v_lshlrev_b32 v{U1}, 16, v{U0}"); e(f"v_and_b32 v{U0}, s101, v{U0}")
                e(f"v_add_f32 v{FA+2*k}, v{FA+2*k}, v{U1}"); e(f"v_add_f32 v{FA+2*k+1}, v{FA+2*k+1}, v{U0}")
                if free and len(wreg) < 90: read_frag()
            while nxt + 4 <= F_P + 10 * (j + 1):
                free.append(nxt); nxt += 4
            if j == 5: e(*self.poll_load(SRD_WS, V_L4, f"s{S_GO}", "po"))
        while free and len(wreg) < 90: read_frag()
        self.poll_check(SRD_WS, V_L4, f"s{S_GO}", "po", 1, "-1")
        self.stamp()
        for s in range(16):
            e(f"buffer_load_dwordx4 {R(FB+4*s,4)}, v{F_AO}, {ws}, s{S_OO} offen sc1", ("o", s))
            if s < 15: self.put(self.step(S_OO, 131072, S_OB, S_OE))
        for s in (16, 17):
            for jj in range(4):
                e(f"buffer_load_dword v{FB+4*s+jj}, v{F_AOE}, {ws}, s{S_OX} offen sc1", ("o", s))
                e(f"s_add_u32 s{S_OX}, s{S_OX}, {8192 if jj < 3 else 131072 - 3*8192}")
        for i, (s, t) in enumerate(frags):
            if t == 0: e.wait(vm=[("o", s)])
            e.wait(lg=[("g", i)])
            d = R(FA + 4 * t, 4)
            e(f"v_mfma_f32_16x16x32_bf16 {d}, {R(wreg[i],4)}, {R(FB+4*s,4)}, {d}")
            if len(wreg) < 90:
                free.append(wreg[i]); read_frag()
        for t in range(5):
            for r in range(2): e(f"v_cvt_pk_bf16_f32 v{FT+2*t+r}, v{FA+4*t+2*r}, v{FA+4*t+2*r+1}")
            if t < 4: e(f"buffer_store_dwordx2 {R(FT+2*t,2)}, v{F_AX}, {sr(SRD_OUT)}, 0 offen offset:{t*32}")
            else: e(f"buffer_store_dwordx2 {R(FT+2*t,2)}, v{F_AXQ}, {sr(SRD_OUT)}, 0 offen")

    def finish(self):
        e = self.e
        if self.diag:
            self.stamp()
            e.wait(vm="all")
            self.stamp()
            e(f"s_mov_b32 s10, {DIAG + 0x400000}")
            e("s_lshl_b32 s100, s2, 2"); e(f"s_add_u32 s100, s100, s{S_W}"); e("s_lshl_b32 s100, s100, 8")
            e(f"s_add_u32 s100, s100, {DIAG}")
            e(f"v_lshrrev_b32 v1, 2, v{V_L16}")
            e(f"buffer_store_dword v{V_DG}, v1, {sr(SRD_WS)}, s100 offen")
        e.label("L_end")
        e("s_endpgm")
        i = 0
        while i < len(self.tail):
            e.vm = []; e.lg = []
            self.tail[i](); i += 1
        e.raw("L_codeend:")

    def build(self):
        e = self.e
        self.setup()
        self.layernorm_load()
        self.touch_addrs()
        self.put(self.touch("A"))
        self.code_prefetch()
        self.flags_setup()
        self.w_addr_ab()
        self.layernorm()
        self.stamp()
        self.touch_addrs2()
        self.arrive()
        for n in range(self.nw0): self.put(self.issue_w(n))
        self.addr_rest()
        self.gemms()
        self.attention()
        self.final()
        self.finish()
        print(f"{e.count} instrs, {e.nops} nop states, {e.forced} vm-limit waits, {self.forced} forced issues, {self.nst} stamps")
        head = open("parallel_sum__mha_block__glu_gated_bilinear__prompt.s.ref").read().split("; Override launch")[0]
        return (head + f"; @launch grid=(256,1,1) block=(256,1,1) lds={LDS_BYTES}\n"
                + '.amdgcn_target "amdgcn-amd-amdhsa--gfx950"\n.text\n' + e.text()
                + '.section .rodata,"a"\n.p2align 6\n' + kernel_desc(NAME, 512, 256))

if __name__ == "__main__":
    open("m2.s", "w").write(Gen().build())
    open("m2_diag.s", "w").write(Gen(diag=True).build())
    open("m2_fine.s", "w").write(Gen(diag=True, fine=True).build())
```
